```python
import torch

def _softmax(x, axis=-1):
    return torch.softmax(x, dim=axis)
def _gelu(x):
    return torch.nn.functional.gelu(x, approximate="tanh")
def _silu(x):
    return torch.nn.functional.silu(x)
def _sigmoid(x):
    return torch.sigmoid(x)
def _layernorm(x, axis=-1, eps=1e-5):
    m = x.mean(dim=axis, keepdim=True)
    v = x.var(dim=axis, keepdim=True, unbiased=False)
    return (x - m) / torch.sqrt(v + eps)
def _scatter_add(tgt, idx, src, axis=0):
    return tgt.clone().index_add_(axis, idx, src)
def _segment_sum(src, seg, n):
    out = torch.zeros((n,) + src.shape[1:], dtype=src.dtype)
    return out.index_add_(0, seg, src)
def _pad(x, pw):
    flat = tuple(v for pair in reversed(pw) for v in pair)
    return torch.nn.functional.pad(x, flat)

kernel_name = 'recurrent_scan__sliding_block_cached__swiglu_ffn__prompt'

def setup_inputs():

    _w = (lambda a: (lambda t: t.to(torch.bfloat16) if t.is_floating_point() else t)(torch.as_tensor(a)))
    def _A_setup():
        B, Sq, D = 1, 2048, 576
        Hq, Hkv, Sk, Dh = 32, 16, 2048, 128
        assert Hq % Hkv == 0, (Hq, Hkv)
        return {
            "x": _w((lambda *s: torch.randn(*s, dtype=torch.bfloat16) * 0.05)(B, Sq, D)),
            "k_cache": _w((lambda *s: torch.randn(*s, dtype=torch.bfloat16) * 0.8)(B, Hkv, Sk, Dh)),
            "v_cache": _w((lambda *s: torch.randn(*s, dtype=torch.bfloat16) * 0.2)(B, Hkv, Sk, Dh)),
            "wq": _w((lambda *s: torch.randn(*s, dtype=torch.bfloat16) * 0.8)(D, Hq * Dh) * (D ** -0.5)),
            "wo": _w((lambda *s: torch.randn(*s, dtype=torch.bfloat16) * 0.2)(Hq * Dh, D) * ((Hq * Dh) ** -0.5)),
        }
    _A_in = _A_setup()

    def _B_setup():
        B, S, D, F = 1, 2048, 576, 4608
        return {
            "x": _w((lambda *s: torch.randn(*s, dtype=torch.bfloat16) * 0.05)(B, S, D)),
            "w_gate": _w((lambda *s: torch.randn(*s, dtype=torch.bfloat16) * 0.1)(D, F)),
            "w_up": _w((lambda *s: torch.randn(*s, dtype=torch.bfloat16) * 0.1)(D, F)),
            "w_down": _w((lambda *s: torch.randn(*s, dtype=torch.bfloat16) * 0.1)(F, D)),
        }
    _B_in = _B_setup()

    return {
        "A_x": _A_in["x"],
        "A_k_cache": _A_in["k_cache"],
        "A_v_cache": _A_in["v_cache"],
        "A_wq": _A_in["wq"],
        "A_wo": _A_in["wo"],
        "B_x": _B_in["x"],
        "B_w_gate": _B_in["w_gate"],
        "B_w_up": _B_in["w_up"],
        "B_w_down": _B_in["w_down"],
    }

def reference(A_x, A_k_cache, A_v_cache, A_wq, A_wo, B_x, B_w_gate, B_w_up, B_w_down):
    def _A_ref(x, k_cache, v_cache, wq, wo):
        B, Sq, D = x.shape
        Hq, Dh = 32, 128
        Hkv, Sk = k_cache.shape[1], k_cache.shape[2]
        W = min(4096, max(256, Sk // 4))
        rep = Hq // Hkv
        q = (lambda x, *d: x.permute(*d))((x @ wq).reshape(B, Sq, Hq, Dh), 0, 2, 1, 3)
        k = (lambda x, n, axis: torch.repeat_interleave(x, n, dim=axis))(k_cache[:, :, Sk - W:, :], rep, axis=1)
        v = (lambda x, n, axis: torch.repeat_interleave(x, n, dim=axis))(v_cache[:, :, Sk - W:, :], rep, axis=1)
        scores = torch.einsum("bhqd,bhkd->bhqk", q, k) * (Dh ** -0.5)
        p = _softmax(scores, axis=-1)
        o = torch.einsum("bhqk,bhkd->bhqd", p, v)
        return (lambda x, *d: x.permute(*d))(o, 0, 2, 1, 3).reshape(B, Sq, Hq * Dh) @ wo

    def _B_ref(x, w_gate, w_up, w_down):
        g = _silu(x @ w_gate)
        u = x @ w_up
        return (g * u) @ w_down

    x = A_x
    xn = _layernorm(x, axis=-1)
    s = _A_ref(xn, A_k_cache, A_v_cache, A_wq, A_wo)
    g = _silu(_B_ref(xn, B_w_gate, B_w_up, B_w_down))
    return x + s * g
```

```python
import re

def R(f, a, n=1):
    return f"{f}{a}" if n == 1 else f"{f}[{a}:{a+n-1}]"
def v(a, n=1): return R("v", a, n)
def a_(a, n=1): return R("a", a, n)
def s(a, n=1): return R("s", a, n)

_reg = re.compile(r"^(-|abs\()?-?([vas])(\d+)\)?$|^(-|abs\()?-?([vas])\[(\d+):(\d+)\]\)?$")
def regs_of(op):
    op = op.strip()
    if op in ("vcc", "exec", "m0", "scc"): return [op]
    if op in ("vcc_lo", "vcc_hi"): return ["vcc"]
    m = _reg.match(op)
    if not m: return []
    if m.group(2): return [m.group(2) + m.group(3)]
    return [m.group(5) + str(i) for i in range(int(m.group(6)), int(m.group(7)) + 1)]

TRANS = ("v_exp_f32", "v_log_f32", "v_rcp_f32", "v_rsq_f32", "v_sqrt_f32", "v_sin_f32", "v_cos_f32")

class Ins:
    __slots__ = ("text", "mn", "ops", "wr", "rd", "kind", "tag", "cost", "srcC", "srcAB")
    def __init__(self, text, tag=None):
        self.text = text; self.tag = tag
        t = text.split(";")[0].strip()
        self.srcC = []; self.srcAB = []
        if not t or t.endswith(":") or t.startswith("."):
            self.mn = ""; self.ops = []; self.wr = []; self.rd = []; self.kind = "label"; self.cost = 0; return
        p = t.split(None, 1)
        mn = p[0]; self.mn = mn
        rest = p[1] if len(p) > 1 else ""
        ops = [o.strip() for o in rest.split(",")] if rest else []
        mods = ""
        if ops:
            q = ops[-1].split(None, 1)
            ops[-1] = q[0]; mods = q[1] if len(q) > 1 else ""
        self.ops = ops
        wr = []; rd = []; self.cost = 4
        allr = lambda lst: [r for o in lst for r in regs_of(o)]
        if mn.startswith("v_mfma"):
            self.kind = "mfma"; wr = regs_of(ops[0]); self.srcAB = allr(ops[1:3]); self.srcC = regs_of(ops[3]); rd = self.srcAB + self.srcC
            self.cost = 8
        elif mn.startswith("buffer_load") or mn.startswith("global_load"):
            if "lds" in mods.split() or "_lds_" in mn:
                self.kind = "dma"; rd = allr(ops) + ["m0"]
            else:
                self.kind = "vload"; wr = regs_of(ops[0]); rd = allr(ops[1:])
        elif mn.startswith("buffer_store") or mn.startswith("global_store"):
            self.kind = "vstore"; rd = allr(ops)
        elif mn.startswith("buffer_atomic") or mn.startswith("global_atomic"):
            self.kind = "vatomic"; rd = allr(ops)
            if "sc0" in mods.split(): wr = regs_of(ops[0]); self.kind = "vload"
        elif mn in ("buffer_wbl2", "buffer_inv"):
            self.kind = "vstore"
        elif mn.startswith("ds_read") or mn.startswith("ds_bpermute") or mn.startswith("ds_swizzle") or mn.startswith("ds_permute"):
            self.kind = "dsread"; wr = regs_of(ops[0]); rd = allr(ops[1:])
        elif mn.startswith("ds_write"):
            self.kind = "dswrite"; rd = allr(ops)
        elif mn.startswith("s_load") or mn in ("s_memtime", "s_memrealtime"):
            self.kind = "smem"; wr = regs_of(ops[0]); rd = allr(ops[1:])
        elif mn == "s_waitcnt": self.kind = "wait"
        elif mn == "s_nop": self.kind = "nop"; self.cost = 4 * (int(ops[0], 0) + 1)
        elif mn in ("s_barrier", "s_endpgm", "s_setprio", "s_sleep") or mn.startswith("s_branch") or mn.startswith("s_cbranch"):
            self.kind = "ctl"
            if "vcc" in mn: rd = ["vcc"]
        elif mn.startswith("s_cmp"):
            self.kind = "salu"; rd = allr(ops); wr = ["scc"]
        elif mn.startswith("s_"):
            self.kind = "salu"; wr = regs_of(ops[0]); rd = allr(ops[1:])
            if "saveexec" in mn: wr += ["exec"]
            if mn in ("s_addk_i32", "s_mulk_i32"): rd += wr
        elif mn.startswith("v_cmp"):
            self.kind = "valu"; wr = regs_of(ops[0]); rd = allr(ops[1:])
        elif mn.startswith("v_permlane") and "swap" in mn:
            self.kind = "valu"; wr = allr(ops[:2]); rd = allr(ops[:2])
        elif mn.startswith("v_"):
            self.kind = "valu"; wr = regs_of(ops[0]); rd = allr(ops[1:])
            if mn.startswith(("v_add_co", "v_addc_co", "v_sub_co", "v_subb_co")): wr += regs_of(ops[1])
            if mn.startswith(("v_fmac", "v_dot2c", "v_writelane")): rd += wr
            if mn.replace("_e32", "").replace("_e64", "") in TRANS: self.cost = 8
        else:
            raise ValueError("unknown instr: " + text)
        self.wr = wr; self.rd = rd
    def is_trans(self): return self.mn.replace("_e32", "").replace("_e64", "") in TRANS
    def passes(self): return 8 if "32x32" in self.mn else 4

class Prog:
    def __init__(self):
        self.L = []
        self.vm = []
        self.lg = []
    def emit(self, text, tag=None):
        i = Ins(text, tag)
        self.L.append(i)
        if i.kind in ("dma", "vload", "vstore", "vatomic"): self.vm.append(tag if tag is not None else object())
        elif i.kind in ("dsread", "dswrite"): self.lg.append(tag if tag is not None else object())
        elif i.kind == "wait":
            m = re.search(r"vmcnt\((\d+)\)", text)
            if m:
                n = int(m.group(1)); self.vm = self.vm[len(self.vm) - n:] if n < len(self.vm) else self.vm
                if n == 0: self.vm = []
            m = re.search(r"lgkmcnt\((\d+)\)", text)
            if m:
                n = int(m.group(1)); self.lg = self.lg[len(self.lg) - n:] if n < len(self.lg) else self.lg
                if n == 0: self.lg = []
        return i
    def __call__(self, text, tag=None):
        for ln in text.split("\n"):
            if ln.strip(): self.emit(ln.strip(), tag)
    def need_vm(self, tags):
        idx = [i for i, t in enumerate(self.vm) if t in tags]
        if not idx: return None
        return min(63, len(self.vm) - 1 - max(idx))
    def need_lg(self, tags):
        idx = [i for i, t in enumerate(self.lg) if t in tags]
        if not idx: return None
        return min(15, len(self.lg) - 1 - max(idx))
    def wait(self, vm=(), lg=()):
        a = self.need_vm(set(vm)); b = self.need_lg(set(lg))
        if a is None and b is None: return False
        t = "s_waitcnt" + (f" vmcnt({a})" if a is not None else "") + (f" lgkmcnt({b})" if b is not None else "")
        self.emit(t); return True
    def text(self): return "\n".join(i.text for i in self.L) + "\n"

def check(L, name=""):
    probs = []
    n = len(L)
    def states(i, j):
        c = 0
        for k in range(i + 1, j):
            x = L[k]
            if x.kind == "label": continue
            c += (int(x.ops[0], 0) + 1) if x.kind == "nop" else 1
        return c
    W = 24
    for j, y in enumerate(L):
        if y.kind in ("label",): continue
        c = 0
        k = j - 1
        while k >= 0 and c < W:
            x = L[k]
            if x.kind != "label":
                need = 0; why = ""
                xw = set(x.wr)
                if x.kind == "valu":
                    vw = {r for r in xw if r[0] in "va" and r != "vcc"}
                    sw = {r for r in xw if r[0] == "s" or r == "vcc"}
                    if y.kind == "mfma" and vw & set(y.rd): need, why = 2, "valu->mfma"
                    if x.is_trans() and y.kind in ("valu",) and not y.is_trans() and vw & set(y.rd): need, why = max(need, 1), "trans->valu"
                    if x.is_trans() and y.kind in ("vstore", "dswrite", "mfma") and vw & set(y.rd): need, why = max(need, 2), "trans->other"
                    if y.mn.startswith("v_permlane") and vw & set(y.rd): need, why = 2, "valu->permlane"
                    if y.mn.startswith(("v_readfirstlane", "v_readlane")) and vw & set(y.rd): need, why = max(need, 1), "valu->readlane"
                    if ("dpp" in y.text or "row_" in y.text) and y.kind == "valu" and vw & set(y.rd): need, why = 2, "valu->dpp"
                    if y.kind == "valu" and sw & set(y.rd): need, why = max(need, 2), "valu sgpr->valu"
                    if y.kind == "valu" and "vcc" in sw and y.mn.startswith(("v_cndmask", "v_addc", "v_subb")): need, why = max(need, 2), "vcc->valu"
                    if y.kind in ("dma", "vload", "vstore", "vatomic") and sw & set(y.rd): need, why = 5, "valu sgpr->vmem"
                    if y.kind in ("salu", "ctl") and sw & set(y.rd): need, why = max(need, 1), "valu sgpr->salu (soft)"
                if x.kind == "mfma":
                    p = x.passes(); big = 8 if p == 4 else 12; ov = 6 if p == 4 else 10; war = 3 if p == 4 else 7
                    if y.kind in ("valu", "vstore", "dswrite", "vload", "dsread", "dma", "vatomic") and xw & (set(y.rd) | set(y.wr)): need, why = big, "mfma D->valu/mem"
                    if y.kind == "mfma":
                        if xw & set(y.srcAB): need, why = big, "mfma D->AB"
                        elif xw & set(y.srcC) and not (x.wr == y.srcC and p == y.passes()): need, why = ov, "mfma D->C overlap"
                        elif xw & set(y.wr) and not (x.wr == y.srcC): need, why = ov, "mfma D->D waw"
                    if y.kind in ("valu", "dsread", "vload") and set(x.srcC) & set(y.wr): need, why = max(need, war), "mfma C war"
                if x.kind == "salu" and "m0" in xw and y.kind == "dma": need, why = 1, "m0->dma"
                if x.kind == "vstore" and ("x4" in x.mn or "x3" in x.mn) and y.kind in ("valu",) and x.ops and set(regs_of(x.ops[0] if x.mn.startswith("buffer") else x.ops[1])) & set(y.wr): need, why = 2, "store data war"
                if x.kind == "salu" and "exec" in xw and False: pass
                if need > c:
                    probs.append(f"{name} hazard {why}: need {need} have {c}: [{k}] {x.text}  ->  [{j}] {y.text}")
                c += (int(x.ops[0], 0) + 1) if x.kind == "nop" else 1
            k -= 1
    vm = []; lg = []; sm = []
    for j, y in enumerate(L):
        if y.kind == "label": continue
        touched = set(y.rd) | set(y.wr)
        for q, nm in ((vm, "vmem"), (lg, "lds"), (sm, "smem")):
            for (k, regs) in q:
                if regs & touched and not (y.kind == "wait"):
                    probs.append(f"{name} missing wait ({nm}): [{k}] {L[k].text} -> [{j}] {y.text}")
        if y.kind in ("dma", "vstore", "vatomic"):
            vm.append((j, set()))
        elif y.kind == "vload": vm.append((j, set(y.wr)))
        elif y.kind == "dsread": lg.append((j, set(y.wr)))
        elif y.kind == "dswrite": lg.append((j, set()))
        elif y.kind == "smem": sm.append((j, set(y.wr)))
        elif y.kind == "wait":
            m = re.search(r"vmcnt\((\d+)\)", y.text)
            if m:
                c = int(m.group(1)); vm = vm[len(vm) - c:] if 0 < c < len(vm) else ([] if c == 0 else vm)
            m = re.search(r"lgkmcnt\((\d+)\)", y.text)
            if m:
                c = int(m.group(1))
                if sm and c != 0 and lg: probs.append(f"{name} counted lgkmcnt with smem outstanding at [{j}]")
                lg = lg[len(lg) - c:] if 0 < c < len(lg) else ([] if c == 0 else lg)
                if c == 0: sm = []
    return probs

def interleave(P, mf, fill, budget=8, pre=None):
    tot = sum(c for c, _ in fill); n = len(mf); j = 0; acc = 0.0
    for i, m in enumerate(mf):
        m(P) if callable(m) else P(m)
        tgt = tot * (i + 1) / n
        while j < len(fill) and acc + fill[j][0] / 2 <= tgt:
            f = fill[j][1]; f(P) if callable(f) else P(f)
            acc += fill[j][0]; j += 1
    while j < len(fill):
        f = fill[j][1]; f(P) if callable(f) else P(f); j += 1
```

```python
import sys, math, struct
from asmlib import *

NAME = "recurrent_scan__sliding_block_cached__swiglu_ffn__prompt"
XN_OFF = 0
ACT_OFF = 4 << 20
PART_OFF = 44 << 20
WS_USED = 64 << 20
STAMP_OFF = 0xF000000
def f2u(x): return struct.unpack("<I", struct.pack("<f", x))[0]
LOG2E = 1.4426950408889634

class Opt:
    group = 2
    map1 = "4x8"
    stamps = False
    thr = 1024.0
opt = Opt()

def srd(P, d, lo, hi, nbytes):
    P(f"s_mov_b32 s{d}, s{lo}")
    P(f"s_and_b32 s{d+1}, s{hi}, 0xffff")
    P(f"s_mov_b32 s{d+2}, {nbytes}")
    P(f"s_mov_b32 s{d+3}, 0x20000")

def kdesc(k, vgpr, accum, sgpr=102):
    return f""".section .rodata,"a"
.p2align 6
.amdhsa_kernel {k}
  .amdhsa_next_free_vgpr {vgpr}
  .amdhsa_next_free_sgpr {sgpr}
  .amdhsa_accum_offset {accum}
  .amdhsa_group_segment_fixed_size 0
  .amdhsa_kernarg_size 96
  .amdhsa_user_sgpr_count 2
  .amdhsa_user_sgpr_kernarg_segment_ptr 1
  .amdhsa_system_sgpr_workgroup_id_x 1
  .amdhsa_float_denorm_mode_32 3
.end_amdhsa_kernel
.text
"""
def khead(k):
    return f".globl {k}\n.p2align 8\n.type {k},@function\n{k}:\n"

class Stamps:
    def __init__(self, kidx): self.n = 0; self.kidx = kidx
    def mark(self, P):
        if not opt.stamps: return
        P(f"s_memtime s[{80+2*self.n}:{81+2*self.n}]"); P("s_waitcnt lgkmcnt(0)"); self.n += 1
    def real(self, P):
        if not opt.stamps: return
        P(f"s_memrealtime s[{80+2*self.n}:{81+2*self.n}]"); P("s_waitcnt lgkmcnt(0)"); self.n += 1
    def flush(self, P, wsrd, vt):
        if not opt.stamps: return
        P(f"s_mov_b32 s{wsrd+2}, 0x10000000")
        P(f"s_lshl_b32 s78, s2, 6")
        P(f"s_add_u32 s78, s78, {STAMP_OFF + self.kidx * 65536}")
        P(f"v_mov_b32 v{vt+1}, 0")
        P(f"v_cmp_eq_u32 vcc, 0, v0")
        P(f"s_nop 4")
        P(f"s_and_saveexec_b64 s[76:77], vcc")
        P(f"s_cbranch_execz L_st{self.kidx}")
        for i in range(self.n):
            P(f"v_mov_b32 v{vt}, s{80+2*i}")
            P(f"buffer_store_dword v{vt}, v{vt+1}, s[{wsrd}:{wsrd+3}], s78 offen offset:{4*i}")
            P("s_waitcnt vmcnt(0)")
        P(f"L_st{self.kidx}:")
        P(f"s_mov_b64 exec, s[76:77]")

def gen_k0():
    P = Prog(); st = Stamps(0)
    P("s_cmp_ge_u32 s2, 256"); P("s_cbranch_scc1 L_k0_end")
    st.real(P); st.mark(P)
    P("s_load_dwordx2 s[4:5], s[0:1], 0"); P("s_load_dwordx2 s[6:7], s[0:1], 88")
    P("v_and_b32 v1, 7, v0"); P("v_lshrrev_b32 v2, 3, v0")
    P("s_movk_i32 s16, 1152"); P("v_mul_lo_u32 v3, v1, s16"); P("v_lshl_add_u32 v3, v2, 4, v3")
    P("s_mul_i32 s17, s2, 9216")
    P("v_lshrrev_b32 v4, 2, v2"); P("v_lshlrev_b32 v4, 10, v4"); P("v_and_b32 v5, 3, v2"); P("v_lshl_add_u32 v4, v5, 8, v4")
    P("v_lshl_add_u32 v4, v1, 4, v4")
    P("s_lshr_b32 s18, s2, 1"); P("s_mul_i32 s18, s18, 18432"); P("s_and_b32 s19, s2, 1"); P("s_lshl_b32 s19, s19, 7"); P("s_add_u32 s18, s18, s19")
    P("s_waitcnt lgkmcnt(0)")
    srd(P, 8, 4, 5, 2359296); srd(P, 12, 6, 7, WS_USED)
    X = 8
    for i in range(9): P(f"buffer_load_dwordx4 {v(X+4*i,4)}, v3, s[8:11], s17 offen offset:{128*i}", tag=("x", i))
    F = 48
    for i in range(9):
        P.wait(vm=[("x", i)])
        for j in range(4):
            P(f"v_lshlrev_b32 v{F+8*i+2*j}, 16, v{X+4*i+j}"); P(f"v_and_b32 v{F+8*i+2*j+1}, 0xffff0000, v{X+4*i+j}")
        for j in range(8):
            if i == 0 and j < 4: P(f"v_mov_b32 v{120+j}, v{F+j}")
            else: P(f"v_add_f32 v{120+(j&3)}, v{120+(j&3)}, v{F+8*i+j}")
    def reduce8(r):
        P(f"v_add_f32 v{r}, v{r}, v{r+1}"); P(f"v_add_f32 v{r+2}, v{r+2}, v{r+3}"); P("s_nop 0"); P(f"v_add_f32 v{r}, v{r}, v{r+2}")
        P("s_nop 1"); P(f"v_add_f32_dpp v{r}, v{r}, v{r} row_ror:8 row_mask:0xf bank_mask:0xf")
        P(f"v_mov_b32 v{r+1}, v{r}"); P("s_nop 1"); P(f"v_permlane16_swap_b32 v{r}, v{r+1}"); P("s_nop 1"); P(f"v_add_f32 v{r}, v{r}, v{r+1}")
        P(f"v_mov_b32 v{r+1}, v{r}"); P("s_nop 1"); P(f"v_permlane32_swap_b32 v{r}, v{r+1}"); P("s_nop 1"); P(f"v_add_f32 v{r}, v{r}, v{r+1}")
    reduce8(120)
    P(f"v_mul_f32 v124, {hex(f2u(1.0/576))}, v120")
    for k in range(72):
        P(f"v_sub_f32 v{126+(k&1)}, v{F+k}, v124")
        if k < 4: P(f"v_mul_f32 v{120+k}, v{126+(k&1)}, v{126+(k&1)}")
        else: P(f"v_fmac_f32 v{120+(k&3)}, v{126+(k&1)}, v{126+(k&1)}")
    reduce8(120)
    P(f"v_mul_f32 v120, {hex(f2u(1.0/576))}, v120")
    P("v_cvt_pk_bf16_f32 v120, v120, v124")
    P("v_and_b32 v124, 0xffff0000, v120"); P("v_lshlrev_b32 v120, 16, v120")
    P(f"v_add_f32 v120, {hex(f2u(1e-5))}, v120"); P("v_cvt_pk_bf16_f32 v120, v120, v120"); P("v_lshlrev_b32 v120, 16, v120")
    P("v_sqrt_f32 v120, v120"); P("s_nop 0"); P("v_cvt_pk_bf16_f32 v120, v120, v120"); P("v_lshlrev_b32 v120, 16, v120")
    P("v_rcp_f32 v125, v120"); P("s_nop 0")
    for i in range(9):
        for j in range(4):
            a, b = F+8*i+2*j, F+8*i+2*j+1
            P(f"v_sub_f32 v{a}, v{a}, v124"); P(f"v_sub_f32 v{b}, v{b}, v124")
        for j in range(4):
            a, b = F+8*i+2*j, F+8*i+2*j+1
            P(f"v_cvt_pk_bf16_f32 v{X+4*i+j}, v{a}, v{b}")
        for j in range(4):
            a, b = F+8*i+2*j, F+8*i+2*j+1
            P(f"v_lshlrev_b32 v{a}, 16, v{X+4*i+j}"); P(f"v_and_b32 v{b}, 0xffff0000, v{X+4*i+j}")
        for j in range(8): P(f"v_mul_f32 v{F+8*i+j}, v{F+8*i+j}, v125")
        for j in range(4):
            a, b = F+8*i+2*j, F+8*i+2*j+1
            P(f"v_cvt_pk_bf16_f32 v{X+4*i+j}, v{a}, v{b}")
        if i % 2 == 0 and i > 0: P("s_add_u32 s18, s18, 4096")
        P(f"buffer_store_dwordx4 {v(X+4*i,4)}, v4, s[12:15], s18 offen offset:{2048*(i&1)}")
    if opt.stamps:
        P("s_waitcnt vmcnt(0)"); st.mark(P); st.real(P); st.flush(P, 12, 126)
    P("L_k0_end:"); P("s_endpgm")
    return P

class Sched:
    def __init__(self): self.M = []; self.gap = []; self.load = []
    def mfma(self, text, vm=(), lg=()):
        self.M.append((text, tuple(vm), tuple(lg))); self.gap.append([]); self.load.append(0); return len(self.M) - 1
    def at(self, g, text, tag=None, cost=None, front=False):
        g = max(g, 0)
        c = cost if cost is not None else Ins(text).cost
        if front: self.gap[g].insert(0, (text, tag))
        else: self.gap[g].append((text, tag))
        self.load[g] += c
    def spread(self, ops, g0, g1, cap=8):
        items = [(o, None) if isinstance(o, str) else o for o in ops]
        costs = [Ins(t).cost for t, _ in items]
        C = sum(costs); n = g1 - g0
        free = [max(0, cap - self.load[g]) for g in range(g0, g1)]
        F = sum(free)
        if C > F:
            lvl = cap
            while sum(max(0, lvl - self.load[g]) for g in range(g0, g1)) < C: lvl += 1
            free = [max(0, lvl - self.load[g]) for g in range(g0, g1)]; F = sum(free)
        cum = 0.0; j = 0; placed = 0
        for k in range(n):
            cum += free[k] * C / F
            while j < len(items) and placed + costs[j] / 2 <= cum + 1e-9:
                self.gap[g0 + k].append(items[j]); self.load[g0 + k] += costs[j]; placed += costs[j]; j += 1
        while j < len(items):
            self.gap[g1 - 1].append(items[j]); self.load[g1 - 1] += costs[j]; j += 1
    def emit(self, P, pre=None):
        for i, (t, vm, lg) in enumerate(self.M):
            P.wait(vm=vm, lg=lg)
            P(t)
            for (x, tag) in self.gap[i]:
                if callable(x): x(P)
                else: P(x, tag)

MF = "v_mfma_f32_16x16x32_bf16"

def gen_k1():
    P = Prog(); st = Stamps(1)
    G = opt.group; NSLOT = 16; RG = NSLOT // G; AHEAD = RG - 2
    def slot_addr(c): return (c & 1) * 65536 + ((c >> 1) & 7) * 8192
    sWS, sWG, sWU, sWQ, sK, sV = 8, 12, 16, 20, 24, 28
    sW1k, sW2k = 32, 33
    sXN = [34, 35, 36, 37]; sH = [38, 39, 40, 41]; sHs = [42, 43]; sO = [44, 45, 46, 47]
    sFcol, sFsh, sQb, sKVb = 48, 49, 50, 51
    sT = [52, 53, 54, 55]; sRet = 56; sC_nl2e, sC_qs, sC_thr = 57, 58, 59
    vLane16, vF, vQ0, vQ1, vK0, vK1, vV0, vV1 = 2, 3, 4, 5, 6, 7, 8, 9
    vFb = [[10, 11], [12, 13]]
    vQb = [[14, 15], [16, 17]]
    vKb = [18, 19, 20, 21]; vVb = list(range(22, 30))
    vTmp = 40
    AR = 64
    SETA, SETB = 96, 160
    XNV = 224
    def xn(tb, ks):
        i = ks * 4 + tb
        return a_(4 * i, 4) if i < 64 else v(XNV + 4 * (i - 64), 4)
    acc = lambda base, b, tb: base + 16 * b + 4 * tb

    P("s_cmp_ge_u32 s2, 256"); P("s_cbranch_scc1 L_k1_end")
    st.real(P); st.mark(P)
    P("s_load_dwordx4 s[60:63], s[0:1], 8")
    P("s_load_dwordx2 s[64:65], s[0:1], 24")
    P("s_load_dwordx4 s[68:71], s[0:1], 48")
    P("s_load_dwordx2 s[66:67], s[0:1], 88")
    P("v_lshrrev_b32 v1, 6, v0"); P("v_and_b32 v30, 63, v0"); P("s_nop 0"); P("v_readfirstlane_b32 s3, v1")
    P("s_and_b32 s6, s2, 7"); P("s_lshr_b32 s7, s2, 3")
    if opt.map1 == "4x8":
        P("s_and_b32 s4, s6, 1"); P("s_lshl_b32 s4, s4, 2"); P("s_and_b32 s72, s7, 3"); P("s_add_u32 s4, s4, s72")
        P("s_lshr_b32 s5, s6, 1"); P("s_lshl_b32 s5, s5, 3"); P("s_lshr_b32 s72, s7, 2"); P("s_add_u32 s5, s5, s72")
    elif opt.map1 == "8x4":
        P("s_and_b32 s4, s7, 7"); P("s_lshl_b32 s5, s6, 2"); P("s_lshr_b32 s72, s7, 3"); P("s_add_u32 s5, s5, s72")
    elif opt.map1 == "2x16":
        P("s_and_b32 s4, s6, 3"); P("s_lshl_b32 s4, s4, 1"); P("s_and_b32 s72, s7, 1"); P("s_add_u32 s4, s4, s72")
        P("s_lshr_b32 s5, s6, 2"); P("s_lshl_b32 s5, s5, 4"); P("s_lshr_b32 s72, s7, 1"); P("s_add_u32 s5, s5, s72")
    P(f"s_lshl_b32 s{sW1k}, s3, 10"); P(f"s_lshl_b32 s{sW2k}, s3, 11")
    P("s_and_b32 s6, s5, 1"); P("s_lshr_b32 s7, s5, 1")
    P("s_lshl_b32 s72, s4, 4"); P("s_lshl_b32 s73, s3, 2"); P("s_add_u32 s72, s72, s73"); P("s_lshl_b32 s73, s6, 1")
    P("s_mul_i32 s74, s7, 9"); P("s_mul_i32 s75, s6, 5"); P("s_add_u32 s75, s75, s74")
    for t in range(4):
        P(f"s_xor_b32 s76, s73, {t}"); P("s_add_u32 s76, s76, s72")
        P(f"s_mul_i32 s{sXN[t]}, s76, 18432")
        if XN_OFF: P(f"s_add_u32 s{sXN[t]}, s{sXN[t]}, {XN_OFF}")
        P(f"s_mul_i32 s76, s76, 272")
        P(f"s_add_u32 s77, s76, s75"); P(f"s_lshl_b32 s77, s77, 10"); P(f"s_add_u32 s{sH[t]}, s77, {ACT_OFF + 128*1024}")
        if t < 2:
            P(f"s_add_u32 s77, s76, s74"); P(f"s_lshl_b32 s77, s77, 10"); P(f"s_add_u32 s{sHs[t]}, s77, {ACT_OFF + 132*1024}")
        P(f"s_lshl_b32 s77, s5, 2"); P("s_add_u32 s77, s77, s76"); P("s_lshl_b32 s77, s77, 10"); P(f"s_add_u32 s{sO[t]}, s77, {ACT_OFF}")
    P(f"s_lshl_b32 s{sFcol}, s75, 6"); P(f"s_lshl_b32 s{sFsh}, s74, 6"); P(f"s_add_u32 s{sFsh}, s{sFsh}, 256")
    P(f"s_lshl_b32 s{sQb}, s5, 8")
    P(f"s_mul_i32 s{sKVb}, s7, 524288"); P(f"s_add_u32 s{sKVb}, s{sKVb}, {1536*256}")
    P(f"s_mov_b32 s{sC_nl2e}, {hex(f2u(-LOG2E))}"); P(f"s_mov_b32 s{sC_qs}, {hex(f2u(LOG2E * 128 ** -0.5))}"); P(f"s_mov_b32 s{sC_thr}, {hex(f2u(opt.thr))}")
    P(f"v_lshlrev_b32 v{vLane16}, 4, v30")
    P("v_lshrrev_b32 v31, 2, v30"); P("s_lshl_b32 s76, s3, 4"); P("v_add_u32 v32, s76, v31"); P("s_movk_i32 s77, 9216"); P("v_mul_lo_u32 v32, v32, s77")
    P("v_lshrrev_b32 v33, 1, v30"); P("v_lshrrev_b32 v34, 3, v31"); P("v_xor_b32 v33, v33, v34"); P("v_and_b32 v33, 1, v33"); P("v_lshl_add_u32 v32, v33, 5, v32")
    P("v_and_b32 v33, 1, v30"); P(f"v_lshl_add_u32 v{vF}, v33, 4, v32")
    P("v_lshrrev_b32 v31, 3, v30"); P("v_add_u32 v32, s76, v31"); P("v_lshlrev_b32 v32, 13, v32")
    P("v_lshrrev_b32 v33, 2, v30"); P("v_lshrrev_b32 v34, 1, v31"); P("v_xor_b32 v33, v33, v34"); P("v_and_b32 v33, 1, v33"); P("v_lshl_add_u32 v32, v33, 6, v32")
    P("v_and_b32 v33, 3, v30"); P(f"v_lshl_add_u32 v{vQ0}, v33, 4, v32"); P(f"v_add_u32 v{vQ1}, 0x10000, v{vQ0}")
    P("v_lshrrev_b32 v31, 4, v30"); P("s_lshl_b32 s76, s3, 3"); P("v_add_u32 v31, s76, v31"); P("v_and_b32 v32, 15, v30")
    for i, (rk, rv) in enumerate(((vK0, vV0), (vK1, vV1))):
        if i: P("v_add_u32 v31, 4, v31")
        P("v_xor_b32 v33, v32, v31"); P("v_and_b32 v33, 15, v33"); P("v_lshlrev_b32 v33, 4, v33"); P(f"v_lshl_add_u32 v{rk}, v31, 8, v33")
        P("v_lshrrev_b32 v33, 1, v32"); P("v_xor_b32 v33, v33, v31"); P("v_and_b32 v33, 7, v33"); P("v_lshlrev_b32 v33, 5, v33")
        P("v_and_b32 v34, 1, v32"); P("v_lshl_add_u32 v33, v34, 4, v33"); P(f"v_lshl_add_u32 v{rv}, v31, 8, v33")
    P("v_lshrrev_b32 v31, 4, v30"); P("v_bfe_u32 v32, v30, 2, 2"); P("v_and_b32 v33, 3, v30")
    P("v_lshl_add_u32 v34, v31, 3, v32")
    P("v_lshlrev_b32 v35, 6, v34"); P("v_lshl_add_u32 v35, v33, 3, v35"); P("v_and_b32 v36, 1, v31"); P(f"v_lshl_add_u32 v{vFb[0][0]}, v36, 5, v35")
    P(f"v_xor_b32 v{vFb[0][1]}, 32, v{vFb[0][0]}"); P(f"v_add_u32 v{vFb[1][0]}, 0x10000, v{vFb[0][0]}"); P(f"v_add_u32 v{vFb[1][1]}, 0x10000, v{vFb[0][1]}")
    P("v_lshlrev_b32 v35, 7, v34"); P("v_lshl_add_u32 v35, v33, 4, v35"); P("v_lshrrev_b32 v36, 1, v32"); P(f"v_lshl_add_u32 v{vQb[0][0]}, v36, 6, v35")
    P(f"v_xor_b32 v{vQb[0][1]}, 64, v{vQb[0][0]}"); P(f"v_add_u32 v{vQb[1][0]}, 0x10000, v{vQb[0][0]}"); P(f"v_add_u32 v{vQb[1][1]}, 0x10000, v{vQb[0][1]}")
    NG = 63
    P("v_and_b32 v35, 15, v30"); P("v_xor_b32 v36, v31, v35"); P("v_lshlrev_b32 v36, 4, v36"); P("v_lshl_add_u32 v36, v35, 8, v36")
    P(f"v_add_u32 v{vKb[0]}, 0x10000, v36")
    for s_ in range(1, 4): P(f"v_xor_b32 v{vKb[s_]}, {64*s_}, v{vKb[0]}")
    P("v_lshl_add_u32 v34, v31, 2, v32"); P("v_and_b32 v35, 7, v34"); P("v_lshlrev_b32 v35, 5, v35"); P("v_lshl_add_u32 v35, v34, 8, v35")
    P(f"v_lshl_add_u32 v{vVb[0]}, v33, 3, v35")
    for d in range(1, 8): P(f"v_xor_b32 v{vVb[d]}, {32*d}, v{vVb[0]}")
    P("s_waitcnt lgkmcnt(0)")
    srd(P, sWS, 66, 67, WS_USED); srd(P, sWG, 68, 69, 5308416); srd(P, sWU, 70, 71, 5308416)
    srd(P, sWQ, 64, 65, 4718592); srd(P, sK, 60, 61, 8388608); srd(P, sV, 62, 63, 8388608)

    chains = [dict(kind="F", base=SETA, tbs=[0, 1], col=("sh", 0))]
    for n in range(4): chains.append(dict(kind="F", base=(SETB, SETA)[n & 1], tbs=[0, 1, 2, 3], col=("n", n)))
    chains.append(dict(kind="Q", base=SETB, tbs=[0, 1, 2, 3], qc=0)); chains.append(dict(kind="Q", base=SETA, tbs=[0, 1, 2, 3], qc=1))
    NCH = NG + 32
    tcount = [0]
    def dma(c):
        if c >= NCH: return []
        L = slot_addr(c); t = sT[tcount[0] & 3]; tcount[0] += 1; out = []
        if c < NG:
            ch = chains[c // 9]; ci = c % 9
            if ch["kind"] == "F":
                sb, off = (sFsh, 0) if ch["col"][0] == "sh" else (sFcol, 64 * ch["col"][1])
                out += [(f"s_add_u32 s{t}, s{sb}, {ci*64*9216 + off}", None), (f"s_add_u32 m0, s{sW1k}, {L}", None), ("s_nop 0", None) if False else None,
                        (f"buffer_load_dwordx4 v{vF}, s[{sWG}:{sWG+3}], s{t} offen lds", ("c", c)),
                        (f"s_add_u32 m0, s{sW1k}, {L+4096}", None),
                        (f"buffer_load_dwordx4 v{vF}, s[{sWU}:{sWU+3}], s{t} offen lds", ("c", c))]
            else:
                out += [(f"s_add_u32 s{t}, s{sQb}, {ci*64*8192 + 128*ch['qc']}", None), (f"s_add_u32 m0, s{sW2k}, {L}", None),
                        (f"buffer_load_dwordx4 v{vQ0}, s[{sWQ}:{sWQ+3}], s{t} offen lds", ("c", c)),
                        (f"s_add_u32 m0, s{sW2k}, {L+1024}", None),
                        (f"buffer_load_dwordx4 v{vQ1}, s[{sWQ}:{sWQ+3}], s{t} offen lds", ("c", c))]
        else:
            i = (c - NG) >> 1; isv = (c - NG) & 1
            r0, r1, sr = (vV0, vV1, sV) if isv else (vK0, vK1, sK)
            out += [(f"s_add_u32 s{t}, s{sKVb}, {i*8192}", None), (f"s_add_u32 m0, s{sW2k}, {L}", None),
                    (f"buffer_load_dwordx4 v{r0}, s[{sr}:{sr+3}], s{t} offen lds", ("c", c)),
                    (f"s_add_u32 m0, s{sW2k}, {L+1024}", None),
                    (f"buffer_load_dwordx4 v{r1}, s[{sr}:{sr+3}], s{t} offen lds", ("c", c))]
        out = [o for o in out if o]
        a, b, c1, d, e = out
        return [b, a, c1, d, ("s_nop 0", None), e]
    def xnload(tb, ks):
        t = sT[tcount[0] & 3]; tcount[0] += 1
        return [(f"s_add_u32 s{t}, s{sXN[tb]}, {(ks>>2)*4096}", None),
                (f"buffer_load_dwordx4 {xn(tb, ks)}, v{vLane16}, s[{sWS}:{sWS+3}], s{t} offen offset:{(ks&3)*1024}", ("x", tb, ks))]
    PRE = AHEAD * G + G
    pro = []
    for ci in range(9):
        pro += dma(ci)
        for s_ in range(2):
            for tb in (0, 1): pro += xnload(tb, 2 * ci + s_)
    late = []
    for ci in range(9):
        if 9 + ci < PRE: late.append((dma, 9 + ci))
        for s_ in range(2):
            for tb in (2, 3): late.append((xnload, tb, 2 * ci + s_))
    for (t, tag) in pro: P(t, tag)
    st.mark(P)

    S = Sched()
    fragc = [0]
    first_read = {}
    def place_reads(reads, g, c):
        if c not in first_read: first_read[c] = g
        return reads
    wins = []
    def add_window(mf, reads, chunk):
        start = len(S.M)
        for k, (t, vm, lg) in enumerate(mf): S.mfma(t, vm, lg)
        wins.append(dict(start=start, n=len(mf), reads=reads, chunk=chunk))
    chain_span = []
    for cn, ch in enumerate(chains):
        c_start = len(S.M)
        for ci in range(9):
            c = cn * 9 + ci; L = slot_addr(c); half = L >> 16; Lo = L & 0xffff
            for b in range(4):
                fr = [AR + 4 * ((fragc[0] + s_) & 7) for s_ in range(2)]; fragc[0] += 2
                reads = []
                for s_ in range(2):
                    for t in range(2):
                        if ch["kind"] == "F": base = vFb[half][b & 1]; off = Lo + (b >> 1) * 4096 + (32 * s_ + 4 * t) * 64
                        else: base = vQb[half][b >> 1]; off = Lo + (32 * s_ + 4 * t) * 128 + 8 * (b & 1)
                        reads.append((f"ds_read_b64_tr_b16 {v(fr[s_]+2*t,2)}, v{base} offset:{off}", ("r", c, b)))
                mf = []
                for tb in ch["tbs"]:
                    for s_ in range(2):
                        ks = 2 * ci + s_; A = acc(ch["base"], b, tb)
                        Cc = "0" if ks == 0 else v(A, 4)
                        mf.append((f"{MF} {v(A,4)}, {v(fr[s_],4)}, {xn(tb, ks)}, {Cc}", [("x", tb, ks)], [("r", c, b)]))
                add_window(mf, reads, c)
        chain_span.append((c_start, len(S.M)))
    X, Y = SETB, SETA
    def Qf(s_, tb): return acc(X, 2 * s_, tb) if s_ < 2 else acc(Y, 2 * (s_ - 2), tb)
    def Sr(p, kb, tb): return (acc(X, 1 + 2 * kb, tb) if p == 0 else XNV + 16 * kb + 4 * tb)
    def Pr(p, tb): return acc(Y, 1 + 2 * p, tb)
    NEGM = AR; vL = 80; vTS = 84; vE = vTmp
    KF = 128; VF = 160
    def Or(db, tb): return 16 * db + 4 * tb
    def qk_window(i, kb, czero, kslist=(0, 1, 2, 3), with_reads=True):
        c = NG + 2 * i; Lo = slot_addr(c) & 0xffff
        reads = [(f"ds_read_b128 {a_(KF+16*kb+4*s_,4)}, v{vKb[s_]} offset:{Lo + 4096*kb}", ("k", i, kb)) for s_ in range(4)] if with_reads else []
        mf = []
        for tb in range(4):
            for s_ in kslist:
                D = v(Sr(i & 1, kb, tb), 4)
                Cc = D if s_ else ("0" if czero else v(NEGM + 4 * tb, 4))
                mf.append((f"{MF} {D}, {a_(KF+16*kb+4*s_,4)}, {v(Qf(s_, tb),4)}, {Cc}", [], [("k", i, kb)]))
        add_window(mf, reads, c)
    def pv_window(i, h):
        c = NG + 2 * i + 1; Lo = slot_addr(c) & 0xffff
        reads = []; mf = []
        for db in range(4 * h, 4 * h + 4):
            for t in range(2): reads.append((f"ds_read_b64_tr_b16 {a_(VF+4*db+2*t,2)}, v{vVb[db]} offset:{Lo + 4096*t}", ("v", i, db >> 1)))
            for tb in range(4):
                D = a_(Or(db, tb), 4)
                mf.append((f"{MF} {D}, {a_(VF+4*db,4)}, {v(Pr(i&1, tb),4)}, {'0' if i == 0 else D}", [], [("v", i, db >> 1)]))
        add_window(mf, reads, c)
    att0 = len(S.M); nw_gemm = len(wins)
    it_span = []
    qk_window(0, 0, True); qk_window(0, 1, True)
    s0 = len(S.M); qk_window(1, 0, True); qk_window(1, 1, True); it_span.append((s0, len(S.M)))
    for i in range(1, 16):
        s0 = len(S.M)
        if i < 15: qk_window(i + 1, 0, False)
        pv_window(i - 1, 0)
        if i < 15: qk_window(i + 1, 1, False)
        pv_window(i - 1, 1)
        it_span.append((s0, len(S.M)))
    pv_window(15, 0); pv_window(15, 1)
    NM = len(S.M)

    head_reads = []
    for w, W in enumerate(wins):
        if w < nw_gemm:
            src = w - 2
        else:
            src = w - 2
        if src < 0:
            head_reads.append(W); continue
        Wd = wins[src]
        W["g0"] = Wd["start"]; W["g1"] = Wd["start"] + Wd["n"]
    lastuse = {}
    for w, W in enumerate(wins):
        if w >= nw_gemm and W["reads"]:
            key = W["reads"][0][0].split()[1]
            if key in lastuse:
                pw = wins[lastuse[key]]
                if W["g0"] < pw["start"] + pw["n"] - 1:
                    W["g0"] = pw["start"] + pw["n"] - 1; W["g1"] = max(W["g1"], W["g0"] + 1)
                    if lastuse[key] + 1 < w: W["g1"] = wins[lastuse[key] + 1]["start"] + wins[lastuse[key] + 1]["n"]
            lastuse[key] = w
    def barrier_items(g):
        cs = [("c", c) for c in range(G * g, G * g + G)]
        return lambda P_: (P_.wait(vm=cs), P_("s_barrier"))
    seen = set()
    bar_gap = {}
    for W in wins:
        g = W["chunk"] // G
        for gg in range(g + 1):
            if gg not in seen:
                seen.add(gg)
                if "g0" in W:
                    S.at(W["g0"], barrier_items(gg), cost=8); bar_gap[gg] = W["g0"]
                else: bar_gap[gg] = -1
        if "g0" in W:
            n = W["g1"] - W["g0"]; nr = len(W["reads"])
            for k, (t, tag) in enumerate(W["reads"]):
                S.at(W["g0"] + (k * n) // nr, t, tag)
    last_use_gap = {}
    for W in wins: last_use_gap[W["chunk"]] = W["start"] + W["n"] - 1
    nxt = PRE
    gs = sorted(bar_gap)
    nlate = len(late); late_end = chain_span[0][1] - 16
    for idx, g in enumerate(gs):
        ops = []
        g1 = bar_gap[gs[idx + 1]] if idx + 1 < len(gs) else NM
        while late and (nlate - len(late)) < nlate * g1 / late_end:
            u = late.pop(0); ops += u[0](*u[1:])
        while not late and nxt < NCH and (nxt < NSLOT or last_use_gap[nxt - NSLOT] < bar_gap[g]) and nxt < G * (g + AHEAD + 2):
            ops += dma(nxt); nxt += 1
        if ops: S.spread(ops, bar_gap[g] + 1, max(g1, bar_gap[g] + 2))
    assert nxt == NCH and not late, nxt

    def ffn_epi(ch):
        ops = []; T = vTmp
        hs = sHs if ch["col"][0] == "sh" else sH; off = 0 if ch["col"][0] == "sh" else 1024 * ch["col"][1]
        for n_, tb in enumerate(ch["tbs"]):
            stg = T + 16 + 4 * (n_ & 1)
            vals = [(acc(ch["base"], b, tb) + r, acc(ch["base"], 2 + b, tb) + r) for b in range(2) for r in range(4)]
            seq = []
            for step in range(8 + 4):
                if step < 8: g_, u_ = vals[step]; seq.append(f"v_mul_f32 v{T+step}, s{sC_nl2e}, v{g_}"); seq.append(f"v_mul_f32 v{T+8+step}, v{g_}, v{u_}")
                e = step - 1
                if 0 <= e < 8: seq.append(f"v_exp_f32 v{T+e}, v{T+e}")
                e = step - 2
                if 0 <= e < 8: seq.append(f"v_add_f32 v{T+e}, 1.0, v{T+e}")
                e = step - 3
                if 0 <= e < 8: seq.append(f"v_rcp_f32 v{T+e}, v{T+e}")
                e = step - 4
                if 0 <= e < 8:
                    seq.append(f"v_mul_f32 v{T+8+e}, v{T+8+e}, v{T+e}")
                    if e & 1: seq.append(f"v_cvt_pk_bf16_f32 v{stg+(e>>1)}, v{T+8+e-1}, v{T+8+e}")
            seq.append(f"buffer_store_dwordx4 {v(stg,4)}, v{vLane16}, s[{sWS}:{sWS+3}], s{hs[n_]} offen offset:{off}")
            ops += seq
        return ops
    def q_epi(ch):
        ops = []
        for s2 in range(2):
            for tb in range(4):
                A0 = acc(ch["base"], 2 * s2, tb); A1 = acc(ch["base"], 2 * s2 + 1, tb)
                for r in range(4): ops.append(f"v_mul_f32 v{A0+r}, s{sC_qs}, v{A0+r}")
                for r in range(4): ops.append(f"v_mul_f32 v{A1+r}, s{sC_qs}, v{A1+r}")
                ops += [f"v_cvt_pk_bf16_f32 v{A0}, v{A0}, v{A0+1}", f"v_cvt_pk_bf16_f32 v{A0+1}, v{A0+2}, v{A0+3}",
                        f"v_cvt_pk_bf16_f32 v{A0+2}, v{A1}, v{A1+1}", f"v_cvt_pk_bf16_f32 v{A0+3}, v{A1+2}, v{A1+3}"]
        return ops
    for cn in range(1, 7):
        a0, a1 = chain_span[cn]
        ops = ffn_epi(chains[cn - 1]) if chains[cn - 1]["kind"] == "F" else q_epi(chains[cn - 1])
        S.spread(ops, a0 + 6, a1 - 4)
    q2 = q_epi(chains[6])
    S.at(att0 - 1, lambda P_: (P_("s_nop 7"), [P_(x) for x in q2], P_("s_nop 1")), cost=0)

    def xreduce(op, r, t):
        return [f"v_mov_b32 v{t}, v{r}", "s_nop 1", f"v_permlane16_swap_b32 v{r}, v{t}", "s_nop 1", f"{op} v{r}, v{r}, v{t}",
                f"v_mov_b32 v{t}, v{r}", "s_nop 1", f"v_permlane32_swap_b32 v{r}, v{t}", "s_nop 1", f"{op} v{r}, v{r}, v{t}"]
    def max8(p, tb, d):
        a = Sr(p, 0, tb); b = Sr(p, 1, tb)
        return [f"v_max3_f32 v{d}, v{a}, v{a+1}, v{a+2}", f"v_max3_f32 v{d}, v{d}, v{a+3}, v{b}", f"v_max3_f32 v{d}, v{d}, v{b+1}, v{b+2}", f"v_max_f32 v{d}, v{d}, v{b+3}"]
    def softmax(i, ladd=True):
        p = i & 1; ops = []
        seq = [(tb, e) for tb in range(4) for e in range(8)]
        E = lambda k: vE + (k & 7)
        for k in range(32 + 3):
            if k < 32:
                tb, e = seq[k]; ops.append(f"v_exp_f32 v{E(k)}, v{Sr(p, e >> 2, tb) + (e & 3)}")
            k2 = k - 2
            if 0 <= k2 < 32:
                tb, e = seq[k2]
                if e == 0:
                    if ladd: ops.append(f"v_add_f32 v{vL+tb}, v{vL+tb}, v{vTS+tb}")
                elif e == 1: ops.append(f"v_add_f32 v{vTS+tb}, v{E(k2-1)}, v{E(k2)}")
                else: ops.append(f"v_add_f32 v{vTS+tb}, v{vTS+tb}, v{E(k2)}")
                if e & 1: ops.append(f"v_cvt_pk_bf16_f32 v{Pr(p, tb)+(e>>1)}, v{E(k2-1)}, v{E(k2)}")
        return ops
    def check_ops(i):
        t = vTmp + 8
        return [f"v_max3_f32 v{t}, v{vTS}, v{vTS+1}, v{vTS+2}", f"v_max_f32 v{t}, v{t}, v{vTS+3}", f"v_cmp_nle_f32 vcc, v{t}, v{vTmp+9}"]
    init = [f"v_mov_b32 v{vTmp+9}, s{sC_thr}"]
    for tb in range(4): init += max8(0, tb, vTS + tb)
    for tb in range(4): init += xreduce("v_max_f32", vTS + tb, vTmp + 10)
    for tb in range(4):
        for r in range(4): init.append(f"v_sub_f32 v{NEGM+4*tb+r}, 0, v{vTS+tb}")
        init.append(f"v_mov_b32 v{vL+tb}, 0")
        for kb in range(2):
            for r in range(4): init.append(f"v_sub_f32 v{Sr(0,kb,tb)+r}, v{Sr(0,kb,tb)+r}, v{vTS+tb}")
    a0, a1 = it_span[0]
    S.spread(init, a0 + 5, a1)
    fix1 = [f"v_add_f32 v{Sr(1,kb,tb)+r}, v{Sr(1,kb,tb)+r}, v{NEGM+4*tb}" for kb in range(2) for tb in range(4) for r in range(4)]
    sm0 = softmax(0, ladd=False)
    S.at(a1 - 1, lambda P_: ([P_(x) for x in sm0], [P_(x) for x in fix1], P_("s_nop 1")), cost=0)
    for i in range(1, 16):
        a0, a1 = it_span[i]
        S.spread(softmax(i) + check_ops(i), a0, a1 - 1)
        S.at(a1 - 1, "s_nop 0"); S.at(a1 - 1, f"s_cbranch_vccnz L_rare{i}"); S.at(a1 - 1, f"L_back{i}:")
    P.wait(vm=[("c", c) for c in range(G)]); P("s_barrier")
    for W in head_reads:
        for (t, tag) in W["reads"]: P(t, tag)
    if opt.stamps:
        for cn in (1, 5): S.at(chain_span[cn][0], lambda P_: st.mark(P_), cost=0)
        S.at(att0, lambda P_: st.mark(P_), cost=0); S.at(it_span[1][0], lambda P_: st.mark(P_), cost=0)
    S.emit(P)
    st.mark(P)
    for tb in range(4): P(f"v_add_f32 v{vL+tb}, v{vL+tb}, v{vTS+tb}")
    for tb in range(4):
        for x in xreduce("v_add_f32", vL + tb, vTmp + 10): P(x)
    for tb in range(4): P(f"v_rcp_f32 v{vL+tb}, v{vL+tb}")
    P("s_nop 1")
    k = 0
    for s_ in range(4):
        for tb in range(4):
            T = SETA + 16 * (k & 3); k += 1
            for u in range(2):
                for r in range(4): P(f"v_accvgpr_read_b32 v{T+4*u+r}, a{Or(2*s_+u, tb)+r}")
            for e in range(8): P(f"v_mul_f32 v{T+e}, v{T+e}, v{vL+tb}")
            for e in range(4): P(f"v_cvt_pk_bf16_f32 v{T+8+e}, v{T+2*e}, v{T+2*e+1}")
            P(f"buffer_store_dwordx4 {v(T+8,4)}, v{vLane16}, s[{sWS}:{sWS+3}], s{sO[tb]} offen offset:{1024*s_}")
    if opt.stamps:
        P("s_waitcnt vmcnt(0)"); st.mark(P); st.real(P); st.flush(P, sWS, vTmp)
    P("L_k1_end:"); P("s_endpgm")
    main = P
    Q = Prog()
    for i in range(1, 16):
        Q(f"L_rare{i}:"); Q(f"s_mov_b32 s{sRet}, {i}"); Q(f"s_branch L_rarebody{i&1}")
    for p in range(2):
        Q(f"L_rarebody{p}:"); Q("s_nop 15")
        d = vTmp + 11; f = vTmp + 12; t = vTmp + 13
        for tb in range(4):
            for x in max8(p, tb, d): Q(x)
            for x in xreduce("v_max_f32", d, vTmp + 10): Q(x)
            Q(f"v_max_f32 v{d}, 0, v{d}")
            Q(f"v_sub_f32 v{f}, 0, v{d}"); Q(f"v_exp_f32 v{f}, v{f}")
            for r in range(4): Q(f"v_sub_f32 v{NEGM+4*tb+r}, v{NEGM+4*tb+r}, v{d}")
            for pp in range(2):
                for kb in range(2):
                    for r in range(4): Q(f"v_sub_f32 v{Sr(pp,kb,tb)+r}, v{Sr(pp,kb,tb)+r}, v{d}")
            Q(f"v_mul_f32 v{vL+tb}, v{vL+tb}, v{f}")
            for db in range(8):
                for r in range(4):
                    Q(f"v_accvgpr_read_b32 v{t}, a{Or(db,tb)+r}"); Q(f"v_mul_f32 v{t}, v{t}, v{f}"); Q(f"v_accvgpr_write_b32 a{Or(db,tb)+r}, v{t}")
        for x in softmax(p, ladd=False): Q(x)
        Q("s_nop 3")
        for i in range(1, 16):
            if (i & 1) == p: Q(f"s_cmp_eq_u32 s{sRet}, {i}"); Q(f"s_cbranch_scc1 L_back{i}")
        Q("s_endpgm")
    return main, Q, S

def gen_k2():
    P = Prog(); st = Stamps(2)
    sWS, sW = 8, 12
    sB = [16, 17, 18, 19]; sWo = 20; sLw = 21; sNG = 22; sT = [24, 25, 26, 27]; sP = 28
    vLane16 = 2; vW = list(range(3, 12)); vRb = [12, 13, 14, 15]
    AR = 32; ACC = 64; ST = 208
    acc = lambda b, tb: ACC + 16 * b + 4 * tb
    NB = 8
    def bf(ks, tb): return a_(16 * (ks % NB) + 4 * tb, 4)
    P("s_cmp_ge_u32 s2, 256"); P("s_cbranch_scc1 L_k2_end")
    st.real(P); st.mark(P)
    P("s_load_dwordx2 s[60:61], s[0:1], 32"); P("s_load_dwordx2 s[62:63], s[0:1], 64"); P("s_load_dwordx2 s[66:67], s[0:1], 88")
    P("v_lshrrev_b32 v1, 6, v0"); P("v_and_b32 v30, 63, v0"); P("s_nop 0"); P("v_readfirstlane_b32 s3, v1")
    P("s_and_b32 s4, s2, 7"); P("s_lshr_b32 s5, s2, 5"); P("s_bfe_u32 s6, s2, 0x20003")
    P("s_and_b32 s7, s4, 3")
    P("s_mul_i32 s30, s7, 32"); P("s_mul_i32 s31, s7, 36"); P("s_add_u32 s32, s31, 128")
    P("s_cmp_lt_u32 s4, 4")
    P("s_cselect_b32 s33, s30, s31")
    P("s_cselect_b32 s34, s30, s32")
    P(f"s_cselect_b32 s{sNG}, 8, 9")
    P("s_lshl_b32 s35, s5, 4"); P("s_lshl_b32 s36, s3, 2"); P("s_add_u32 s35, s35, s36")
    for t in range(4):
        P(f"s_add_u32 s36, s35, {t}"); P("s_mul_i32 s36, s36, 272"); P("s_add_u32 s36, s36, s34"); P("s_lshl_b32 s36, s36, 10"); P(f"s_add_u32 s{sB[t]}, s36, {ACT_OFF}")
    P("s_add_u32 s36, s33, s3"); P(f"s_mul_i32 s36, s36, {32*1152}"); P("s_mul_i32 s37, s6, 288"); P(f"s_add_u32 s{sWo}, s36, s37")
    P(f"s_mul_i32 s{sLw}, s3, 9216")
    P("s_lshl_b32 s36, s4, 3"); P("s_add_u32 s36, s36, s5"); P("s_lshl_b32 s36, s36, 2"); P("s_add_u32 s36, s36, s6"); P("s_lshl_b32 s36, s36, 2"); P("s_add_u32 s36, s36, s3")
    P(f"s_mul_i32 s36, s36, 18432"); P(f"s_add_u32 s{sP}, s36, {PART_OFF}")
    P(f"v_lshlrev_b32 v{vLane16}, 4, v30")
    P(f"s_mov_b32 s36, {(2**32 + 17) // 18}"); P("s_movk_i32 s37, 1152")
    for i in range(9):
        P(f"v_add_u32 v31, {64*i}, v30"); P("v_mul_hi_u32 v16, v31, s36"); P("v_mul_u32_u24 v17, 18, v16"); P("v_sub_u32 v17, v31, v17")
        P("v_mul_lo_u32 v16, v16, s37"); P(f"v_lshl_add_u32 v{vW[i]}, v17, 4, v16")
    P("v_lshrrev_b32 v16, 2, v30"); P("s_movk_i32 s37, 288"); P("v_mul_lo_u32 v16, v16, s37"); P("v_and_b32 v17, 3, v30"); P(f"v_lshl_add_u32 v{vRb[0]}, v17, 3, v16")
    for j in range(1, 4): P(f"v_add_u32 v{vRb[j]}, {36864*j}, v{vRb[0]}")
    P("s_waitcnt lgkmcnt(0)")
    srd(P, sWS, 66, 67, WS_USED)
    P("s_cmp_lt_u32 s4, 4"); P(f"s_cselect_b32 s{sW}, s60, s62"); P(f"s_cselect_b32 s{sW+1}, s61, s63"); P(f"s_mov_b32 s36, 4718592"); P(f"s_cselect_b32 s{sW+2}, s36, {5308416}")
    P(f"s_and_b32 s{sW+1}, s{sW+1}, 0xffff"); P(f"s_mov_b32 s{sW+3}, 0x20000")
    tc = [0]
    def dma(g):
        if g >= 9: return []
        t = sT[tc[0] & 3]; tc[0] += 1
        out = []
        for i in range(9):
            out.append((f"s_add_u32 m0, s{sLw}, {(g & 3)*36864 + 1024*i}", None))
            out.append((f"s_add_u32 s{t}, s{sWo}, {g*128*1152}", None) if i == 0 else ("s_nop 0", None))
            out.append((f"buffer_load_dwordx4 v{vW[i]}, s[{sW}:{sW+3}], s{t} offen lds", ("c", g)))
        return out
    def bload(ks):
        if ks >= 36: return []
        out = []
        for tb in range(4):
            t = sT[tc[0] & 3]; tc[0] += 1
            out.append((f"s_add_u32 s{t}, s{sB[tb]}, {(ks >> 2)*4096}", None))
            out.append((f"buffer_load_dwordx4 {bf(ks, tb)}, v{vLane16}, s[{sWS}:{sWS+3}], s{t} offen offset:{(ks&3)*1024}", ("b", ks, tb)))
        return out
    for x in bload(0) + bload(1) + dma(0) + bload(2) + bload(3) + dma(1) + bload(4) + bload(5) + bload(6) + bload(7) + dma(2): P(*x)
    st.mark(P)
    S = Sched(); wins = []; fc = 0; gspan = []
    for g in range(9):
        g0 = len(S.M)
        for hp in range(2):
            for b in range(9):
                fr = [AR + 4 * ((fc + s_) & 7) for s_ in range(2)]; fc += 2
                reads = [(f"ds_read_b64_tr_b16 {v(fr[s_]+2*t,2)}, v{vRb[g&3]} offset:{(2*hp+s_)*9216 + 16*t*288 + 32*b}", ("r", g, hp, b)) for s_ in range(2) for t in range(2)]
                start = len(S.M)
                for tb in range(4):
                    for s_ in range(2):
                        ks = 4 * g + 2 * hp + s_; A = v(acc(b, tb), 4)
                        S.mfma(f"{MF} {A}, {v(fr[s_],4)}, {bf(ks, tb)}, {'0' if ks == 0 else A}", [("b", ks, tb)], [("r", g, hp, b)])
                wins.append(dict(start=start, n=8, reads=reads, g=g, hp=hp, b=b))
        gspan.append((g0, len(S.M)))
    for w, W in enumerate(wins):
        if w < 2: continue
        g0 = wins[w - 2]["start"]
        if W["hp"] == 0 and W["b"] == 0:
            g = W["g"]
            S.at(g0, (lambda gg: lambda P_: (P_.wait(vm=[("c", gg)]), P_("s_barrier")))(g), cost=8)
        for k, (t, tag) in enumerate(W["reads"]): S.at(g0 + 2 * k, t, tag)
    for g in range(9):
        a0, a1 = gspan[g]; mid = (a0 + a1) // 2
        if g >= 1: S.spread(bload(4 * g + 6) + bload(4 * g + 7) + dma(g + 2), a0, mid - 4)
        S.spread(bload(4 * g + 8) + bload(4 * g + 9), mid, a1 - 18)
    S.at(gspan[7][1] - 1, f"s_cmp_eq_u32 s{sNG}, 8"); S.at(gspan[7][1] - 1, "s_cbranch_scc1 L_k2_epi")
    P.wait(vm=[("c", 0)]); P("s_barrier")
    for W in wins[:2]:
        for x in W["reads"]: P(*x)
    S.emit(P)
    P("L_k2_epi:"); P("s_waitcnt lgkmcnt(0)"); st.mark(P); P("s_nop 7")
    k = 0
    for b in range(9):
        for tp in range(2):
            T = ST + 4 * (k & 3)
            for u in range(2):
                A = acc(b, 2 * tp + u)
                P(f"v_cvt_pk_bf16_f32 v{T+2*u}, v{A}, v{A+1}"); P(f"v_cvt_pk_bf16_f32 v{T+2*u+1}, v{A+2}, v{A+3}")
            if k % 4 == 0 and k: P(f"s_add_u32 s{sP}, s{sP}, 4096")
            P(f"buffer_store_dwordx4 {v(T,4)}, v{vLane16}, s[{sWS}:{sWS+3}], s{sP} offen offset:{1024*(k&3)}")
            k += 1
    if opt.stamps:
        P("s_waitcnt vmcnt(0)"); st.mark(P); st.real(P); st.flush(P, sWS, 16)
    P("L_k2_end:"); P("s_endpgm")
    return P, S

def gen_k3():
    P = Prog(); st = Stamps(3)
    P("s_cmp_ge_u32 s2, 576"); P("s_cbranch_scc1 L_k3_end")
    st.real(P); st.mark(P)
    P("s_load_dwordx2 s[4:5], s[0:1], 0"); P("s_load_dwordx2 s[6:7], s[0:1], 72"); P("s_load_dwordx2 s[20:21], s[0:1], 88")
    P("v_lshrrev_b32 v1, 6, v0"); P("v_and_b32 v2, 63, v0"); P("s_nop 0"); P("v_readfirstlane_b32 s3, v1")
    P("s_lshl_b32 s22, s2, 2"); P("s_add_u32 s22, s22, s3")
    P(f"s_mul_hi_u32 s23, s22, {(2**32 + 17) // 18}"); P("s_mul_i32 s24, s23, 18"); P("s_sub_u32 s24, s22, s24")
    P("s_lshr_b32 s25, s23, 4"); P("s_bfe_u32 s26, s23, 0x20002"); P("s_and_b32 s27, s23, 3")
    P("s_lshr_b32 s28, s24, 1"); P("s_and_b32 s29, s24, 1")
    P("s_lshl_b32 s30, s25, 8"); P("s_lshl_b32 s31, s27, 6"); P("s_add_u32 s30, s30, s31"); P("s_lshl_b32 s31, s29, 5"); P("s_add_u32 s30, s30, s31")
    P("s_mul_i32 s30, s30, 1152"); P("s_mul_i32 s31, s26, 288"); P("s_add_u32 s30, s30, s31"); P("s_lshl_b32 s31, s28, 5"); P("s_add_u32 s30, s30, s31")
    P("s_lshl_b32 s32, s22, 10"); P(f"s_add_u32 s32, s32, {PART_OFF}")
    P("v_lshlrev_b32 v3, 4, v2")
    P("v_and_b32 v4, 15, v2"); P("s_movk_i32 s33, 1152"); P("v_mul_lo_u32 v4, v4, s33"); P("v_lshrrev_b32 v5, 4, v2"); P("v_lshl_add_u32 v4, v5, 3, v4")
    P(f"v_add_u32 v5, {16*1152}, v4")
    P("s_waitcnt lgkmcnt(0)")
    srd(P, 8, 4, 5, 2359296); srd(P, 12, 6, 7, 2359296); srd(P, 16, 20, 21, WS_USED)
    for k in range(8):
        P(f"buffer_load_dwordx4 {v(8+4*k,4)}, v3, s[16:19], s32 offen", tag=("p", k))
        if k < 7: P(f"s_add_u32 s32, s32, {128*18432}")
    P("buffer_load_dwordx2 v[40:41], v4, s[8:11], s30 offen", tag="x"); P("buffer_load_dwordx2 v[42:43], v5, s[8:11], s30 offen", tag="x")
    for k in range(8):
        P.wait(vm=[("p", k)])
        D = 44 if k < 4 else 52
        for j in range(4):
            src = 8 + 4 * k + j
            if k & 3 == 0:
                P(f"v_lshlrev_b32 v{D+2*j}, 16, v{src}"); P(f"v_and_b32 v{D+2*j+1}, 0xffff0000, v{src}")
            else:
                P(f"v_lshlrev_b32 v60, 16, v{src}"); P(f"v_and_b32 v61, 0xffff0000, v{src}")
                P(f"v_add_f32 v{D+2*j}, v{D+2*j}, v60"); P(f"v_add_f32 v{D+2*j+1}, v{D+2*j+1}, v61")
    P(f"s_mov_b32 s33, {hex(f2u(-LOG2E))}")
    for e in range(8): P(f"v_mul_f32 v{8+e}, s33, v{52+e}")
    for e in range(8): P(f"v_exp_f32 v{8+e}, v{8+e}")
    for e in range(8): P(f"v_add_f32 v{8+e}, 1.0, v{8+e}")
    for e in range(8): P(f"v_rcp_f32 v{8+e}, v{8+e}")
    for e in range(8): P(f"v_mul_f32 v{44+e}, v{44+e}, v{52+e}")
    P.wait(vm=["x"])
    for j in range(4):
        P(f"v_lshlrev_b32 v{16+2*j}, 16, v{40+j}"); P(f"v_and_b32 v{17+2*j}, 0xffff0000, v{40+j}")
    for e in range(8): P(f"v_fmac_f32 v{16+e}, v{44+e}, v{8+e}")
    for j in range(4): P(f"v_cvt_pk_bf16_f32 v{24+j}, v{16+2*j}, v{17+2*j}")
    P("buffer_store_dwordx2 v[24:25], v4, s[12:15], s30 offen"); P("buffer_store_dwordx2 v[26:27], v5, s[12:15], s30 offen")
    if opt.stamps:
        P("s_waitcnt vmcnt(0)"); st.mark(P); st.real(P); st.flush(P, 16, 60)
    P("L_k3_end:"); P("s_endpgm")
    return P

HDR = open("header.txt").read() if False else ""
def build():
    k0 = gen_k0(); k1, k1r, S1 = gen_k1(); k2, S2 = gen_k2(); k3 = gen_k3()
    probs = check(k0.L, "k0") + check(k1.L, "k1") + check(k1r.L, "k1rare") + check(k2.L, "k2") + check(k3.L, "k3")
    for p in probs[:40]: print("PROBLEM", p, file=sys.stderr)
    out = "; LayerNorm -> (GQA cached attention, SwiGLU FFN) -> x + s * silu(g);  generated by a hand-written scheduler script\n"
    out += "; @launch kernel=ln_kernel grid=(256,1,1) block=(64,1,1) lds=0\n"
    out += "; @launch kernel=main_kernel grid=(256,1,1) block=(256,1,1) lds=131072\n"
    out += "; @launch kernel=proj_kernel grid=(256,1,1) block=(256,1,1) lds=147456\n"
    out += "; @launch kernel=comb_kernel grid=(576,1,1) block=(256,1,1) lds=0\n"
    out += '.amdgcn_target "amdgcn-amd-amdhsa--gfx950"\n.text\n'
    out += khead("ln_kernel") + k0.text() + khead("main_kernel") + k1.text() + k1r.text() + khead("proj_kernel") + k2.text() + khead("comb_kernel") + k3.text()
    out += kdesc("ln_kernel", 128, 128) + kdesc("main_kernel", 512, 256) + kdesc("proj_kernel", 384, 256) + kdesc("comb_kernel", 64, 64)
    est = lambda S: sum(max(16, 8 + l) for l in S.load)
    print(f"k1: {len(S1.M)} mfma, est cycles {est(S1)}, ins {len(k1.L)};  k2: {len(S2.M)} mfma est {est(S2)}; problems {len(probs)}", file=sys.stderr)
    return out, len(probs)

if __name__ == "__main__":
    outp = sys.argv[1]
    for a in sys.argv[2:]:
        k, val = a.split("=")
        cur = getattr(opt, k)
        setattr(opt, k, type(cur)(val) if not isinstance(cur, bool) else val in ("1", "True"))
    txt, n = build()
    open(outp, "w").write(txt)
```

```python
import re

def R(f, a, n=1):
    return f"{f}{a}" if n == 1 else f"{f}[{a}:{a+n-1}]"
def v(a, n=1): return R("v", a, n)
def a_(a, n=1): return R("a", a, n)
def s(a, n=1): return R("s", a, n)

_reg = re.compile(r"^(-|abs\()?-?([vas])(\d+)\)?$|^(-|abs\()?-?([vas])\[(\d+):(\d+)\]\)?$")
def regs_of(op):
    op = op.strip()
    if op in ("vcc", "exec", "m0", "scc"): return [op]
    if op in ("vcc_lo", "vcc_hi"): return ["vcc"]
    m = _reg.match(op)
    if not m: return []
    if m.group(2): return [m.group(2) + m.group(3)]
    return [m.group(5) + str(i) for i in range(int(m.group(6)), int(m.group(7)) + 1)]

TRANS = ("v_exp_f32", "v_log_f32", "v_rcp_f32", "v_rsq_f32", "v_sqrt_f32", "v_sin_f32", "v_cos_f32")

class Ins:
    __slots__ = ("text", "mn", "ops", "wr", "rd", "kind", "tag", "cost", "srcC", "srcAB")
    def __init__(self, text, tag=None):
        self.text = text; self.tag = tag
        t = text.split(";")[0].strip()
        self.srcC = []; self.srcAB = []
        if not t or t.endswith(":") or t.startswith("."):
            self.mn = ""; self.ops = []; self.wr = []; self.rd = []; self.kind = "label"; self.cost = 0; return
        p = t.split(None, 1)
        mn = p[0]; self.mn = mn
        rest = p[1] if len(p) > 1 else ""
        ops = [o.strip() for o in rest.split(",")] if rest else []
        mods = ""
        if ops:
            q = ops[-1].split(None, 1)
            ops[-1] = q[0]; mods = q[1] if len(q) > 1 else ""
        self.ops = ops
        wr = []; rd = []; self.cost = 4
        allr = lambda lst: [r for o in lst for r in regs_of(o)]
        if mn.startswith("v_mfma"):
            self.kind = "mfma"; wr = regs_of(ops[0]); self.srcAB = allr(ops[1:3]); self.srcC = regs_of(ops[3]); rd = self.srcAB + self.srcC
            self.cost = 8
        elif mn.startswith("buffer_load") or mn.startswith("global_load"):
            if "lds" in mods.split() or "_lds_" in mn:
                self.kind = "dma"; rd = allr(ops) + ["m0"]
            else:
                self.kind = "vload"; wr = regs_of(ops[0]); rd = allr(ops[1:])
        elif mn.startswith("buffer_store") or mn.startswith("global_store"):
            self.kind = "vstore"; rd = allr(ops)
        elif mn.startswith("buffer_atomic") or mn.startswith("global_atomic"):
            self.kind = "vatomic"; rd = allr(ops)
            if "sc0" in mods.split(): wr = regs_of(ops[0]); self.kind = "vload"
        elif mn in ("buffer_wbl2", "buffer_inv"):
            self.kind = "vstore"
        elif mn.startswith("ds_read") or mn.startswith("ds_bpermute") or mn.startswith("ds_swizzle") or mn.startswith("ds_permute"):
            self.kind = "dsread"; wr = regs_of(ops[0]); rd = allr(ops[1:])
        elif mn.startswith("ds_write"):
            self.kind = "dswrite"; rd = allr(ops)
        elif mn.startswith("s_load") or mn in ("s_memtime", "s_memrealtime"):
            self.kind = "smem"; wr = regs_of(ops[0]); rd = allr(ops[1:])
        elif mn == "s_waitcnt": self.kind = "wait"
        elif mn == "s_nop": self.kind = "nop"; self.cost = 4 * (int(ops[0], 0) + 1)
        elif mn in ("s_barrier", "s_endpgm", "s_setprio", "s_sleep") or mn.startswith("s_branch") or mn.startswith("s_cbranch"):
            self.kind = "ctl"
            if "vcc" in mn: rd = ["vcc"]
        elif mn.startswith("s_cmp"):
            self.kind = "salu"; rd = allr(ops); wr = ["scc"]
        elif mn.startswith("s_"):
            self.kind = "salu"; wr = regs_of(ops[0]); rd = allr(ops[1:])
            if "saveexec" in mn: wr += ["exec"]
            if mn in ("s_addk_i32", "s_mulk_i32"): rd += wr
        elif mn.startswith("v_cmp"):
            self.kind = "valu"; wr = regs_of(ops[0]); rd = allr(ops[1:])
        elif mn.startswith("v_permlane") and "swap" in mn:
            self.kind = "valu"; wr = allr(ops[:2]); rd = allr(ops[:2])
        elif mn.startswith("v_"):
            self.kind = "valu"; wr = regs_of(ops[0]); rd = allr(ops[1:])
            if mn.startswith(("v_add_co", "v_addc_co", "v_sub_co", "v_subb_co")): wr += regs_of(ops[1])
            if mn.startswith(("v_fmac", "v_dot2c", "v_writelane")): rd += wr
            if mn.replace("_e32", "").replace("_e64", "") in TRANS: self.cost = 8
        else:
            raise ValueError("unknown instr: " + text)
        self.wr = wr; self.rd = rd
    def is_trans(self): return self.mn.replace("_e32", "").replace("_e64", "") in TRANS
    def passes(self): return 8 if "32x32" in self.mn else 4

VM_LIMIT = 60
class Prog:
    def __init__(self):
        self.L = []
        self.vm = []
        self.alt = []
        self.lg = []
        self.issued = set(); self.optional = set()
    def emit(self, text, tag=None):
        i = Ins(text, tag)
        if self.L:
            p = self.L[-1]
            if (i.kind == "dma" and p.kind == "salu" and "m0" in p.wr) or (p.kind == "valu" and p.is_trans() and i.kind == "valu" and not i.is_trans() and set(p.wr) & set(i.rd)):
                self.L.append(Ins("s_nop 0")); self.autonop = getattr(self, "autonop", 0) + 1
        if i.kind in ("dma", "vload", "vstore", "vatomic"):
            self.maxvm = max(getattr(self, "maxvm", 0), max(len(q) for q in [self.vm] + self.alt) + 1)
            if max(len(q) for q in [self.vm] + self.alt) >= VM_LIMIT:
                self.emit(f"s_waitcnt vmcnt({VM_LIMIT - 1})"); self.throttle = getattr(self, "throttle", 0) + 1
        if i.kind in ("dsread", "dswrite"):
            self.maxlg = max(getattr(self, "maxlg", 0), len(self.lg) + 1)
            if len(self.lg) >= 15: self.emit("s_waitcnt lgkmcnt(14)")
        self.L.append(i)
        if i.kind in ("dma", "vload", "vstore", "vatomic"):
            t_ = tag if tag is not None else object()
            self.issued.add(t_)
            self.vm.append(t_)
            for q in self.alt: q.append(t_)
        elif i.kind in ("dsread", "dswrite"): self.lg.append(tag if tag is not None else object()); self.issued.add(tag)
        elif i.kind == "wait":
            m = re.search(r"vmcnt\((\d+)\)", text)
            if m:
                n = int(m.group(1)); self.vm = self.vm[len(self.vm) - n:] if n < len(self.vm) else self.vm
                if n == 0: self.vm = []
                self.alt = [(q[len(q) - n:] if 0 < n < len(q) else ([] if n == 0 else q)) for q in self.alt]
            m = re.search(r"lgkmcnt\((\d+)\)", text)
            if m:
                n = int(m.group(1)); self.lg = self.lg[len(self.lg) - n:] if n < len(self.lg) else self.lg
                if n == 0: self.lg = []
        return i
    def __call__(self, text, tag=None):
        for ln in text.split("\n"):
            if ln.strip(): self.emit(ln.strip(), tag)
    def need_vm(self, tags):
        best = None
        for q in [self.vm] + self.alt:
            idx = [i for i, t in enumerate(q) if t in tags]
            if idx:
                n = min(63, len(q) - 1 - max(idx))
                best = n if best is None else min(best, n)
        return best
    def need_lg(self, tags):
        idx = [i for i, t in enumerate(self.lg) if t in tags]
        if not idx: return None
        return min(15, len(self.lg) - 1 - max(idx))
    def wait(self, vm=(), lg=()):
        for t in list(vm) + list(lg):
            assert t in self.issued or t in self.optional, ("waiting for an op that was not issued yet", t)
        a = self.need_vm(set(vm)); b = self.need_lg(set(lg))
        if a is None and b is None: return False
        t = "s_waitcnt" + (f" vmcnt({a})" if a is not None else "") + (f" lgkmcnt({b})" if b is not None else "")
        self.emit(t); return True
    def text(self): return "\n".join(i.text for i in self.L) + "\n"

def check(L, name=""):
    probs = []
    n = len(L)
    def states(i, j):
        c = 0
        for k in range(i + 1, j):
            x = L[k]
            if x.kind == "label": continue
            c += (int(x.ops[0], 0) + 1) if x.kind == "nop" else 1
        return c
    W = 24
    for j, y in enumerate(L):
        if y.kind in ("label",): continue
        c = 0
        k = j - 1
        while k >= 0 and c < W:
            x = L[k]
            if x.kind != "label":
                need = 0; why = ""
                xw = set(x.wr)
                if x.kind == "valu":
                    vw = {r for r in xw if r[0] in "va" and r != "vcc"}
                    sw = {r for r in xw if r[0] == "s" or r == "vcc"}
                    if y.kind == "mfma" and vw & set(y.rd): need, why = 2, "valu->mfma"
                    if x.is_trans() and y.kind in ("valu",) and not y.is_trans() and vw & set(y.rd): need, why = max(need, 1), "trans->valu"
                    if x.is_trans() and y.kind in ("vstore", "dswrite", "mfma") and vw & set(y.rd): need, why = max(need, 2), "trans->other"
                    if y.mn.startswith("v_permlane") and vw & set(y.rd): need, why = 2, "valu->permlane"
                    if y.mn.startswith(("v_readfirstlane", "v_readlane")) and vw & set(y.rd): need, why = max(need, 1), "valu->readlane"
                    if ("dpp" in y.text or "row_" in y.text) and y.kind == "valu" and vw & set(y.rd): need, why = 2, "valu->dpp"
                    if y.kind == "valu" and sw & set(y.rd): need, why = max(need, 2), "valu sgpr->valu"
                    if y.kind == "valu" and "vcc" in sw and y.mn.startswith(("v_cndmask", "v_addc", "v_subb")): need, why = max(need, 2), "vcc->valu"
                    if y.kind in ("dma", "vload", "vstore", "vatomic") and sw & set(y.rd): need, why = 5, "valu sgpr->vmem"
                    if y.kind in ("salu", "ctl") and sw & set(y.rd): need, why = max(need, 1), "valu sgpr->salu (soft)"
                if x.kind == "mfma":
                    p = x.passes(); big = 8 if p == 4 else 12; ov = 6 if p == 4 else 10; war = 3 if p == 4 else 7
                    if y.kind in ("valu", "vstore", "dswrite", "vload", "dsread", "dma", "vatomic") and xw & (set(y.rd) | set(y.wr)): need, why = big, "mfma D->valu/mem"
                    if y.kind == "mfma":
                        if xw & set(y.srcAB): need, why = big, "mfma D->AB"
                        elif xw & set(y.srcC) and not (x.wr == y.srcC and p == y.passes()): need, why = ov, "mfma D->C overlap"
                        elif xw & set(y.wr) and not (x.wr == y.srcC): need, why = ov, "mfma D->D waw"
                    if y.kind in ("valu", "dsread", "vload") and set(x.srcC) & set(y.wr): need, why = max(need, war), "mfma C war"
                if x.kind == "salu" and "m0" in xw and y.kind == "dma": need, why = 1, "m0->dma"
                if x.kind == "vstore" and ("x4" in x.mn or "x3" in x.mn) and y.kind in ("valu",) and x.ops and set(regs_of(x.ops[0] if x.mn.startswith("buffer") else x.ops[1])) & set(y.wr): need, why = 2, "store data war"
                if x.kind == "salu" and "exec" in xw and False: pass
                if need > c:
                    probs.append(f"{name} hazard {why}: need {need} have {c}: [{k}] {x.text}  ->  [{j}] {y.text}")
                c += (int(x.ops[0], 0) + 1) if x.kind == "nop" else 1
            k -= 1
    vm = []; lg = []; sm = []
    for j, y in enumerate(L):
        if y.kind == "label": continue
        touched = set(y.rd) | set(y.wr)
        for q, nm in ((vm, "vmem"), (lg, "lds"), (sm, "smem")):
            for (k, regs) in q:
                if regs & touched and not (y.kind == "wait") and not (y.kind == "vload" and nm == "vmem" and not (regs & set(y.rd)) and "buffer_load_dword " in y.text):
                    probs.append(f"{name} missing wait ({nm}): [{k}] {L[k].text} -> [{j}] {y.text}")
        if y.kind in ("dma", "vstore", "vatomic"):
            vm.append((j, set()))
        elif y.kind == "vload": vm.append((j, set(y.wr)))
        elif y.kind == "dsread": lg.append((j, set(y.wr)))
        elif y.kind == "dswrite": lg.append((j, set()))
        elif y.kind == "smem": sm.append((j, set(y.wr)))
        elif y.kind == "wait":
            m = re.search(r"vmcnt\((\d+)\)", y.text)
            if m:
                c = int(m.group(1)); vm = vm[len(vm) - c:] if 0 < c < len(vm) else ([] if c == 0 else vm)
            m = re.search(r"lgkmcnt\((\d+)\)", y.text)
            if m:
                c = int(m.group(1))
                if sm and c != 0 and lg: probs.append(f"{name} counted lgkmcnt with smem outstanding at [{j}]")
                lg = lg[len(lg) - c:] if 0 < c < len(lg) else ([] if c == 0 else lg)
                if c == 0: sm = []
    return probs

def interleave(P, mf, fill, budget=8, pre=None):
    tot = sum(c for c, _ in fill); n = len(mf); j = 0; acc = 0.0
    for i, m in enumerate(mf):
        m(P) if callable(m) else P(m)
        tgt = tot * (i + 1) / n
        while j < len(fill) and acc + fill[j][0] / 2 <= tgt:
            f = fill[j][1]; f(P) if callable(f) else P(f)
            acc += fill[j][0]; j += 1
    while j < len(fill):
        f = fill[j][1]; f(P) if callable(f) else P(f); j += 1


class Sched2:
    def __init__(self):
        self.M = []; self.s = []; self.m = []; self.v = []; self.tail = []; self.use = []; self.seen = set(); self.cap = []
    def mfma(self, text, vm=(), lg=()):
        i = len(self.M)
        new = [t for t in list(vm) + list(lg) if t not in self.seen]
        self.seen.update(new)
        self.M.append((text, tuple(vm), tuple(lg)))
        self.s.append([]); self.m.append([]); self.v.append([]); self.tail.append([]); self.use.append(0); self.cap.append(2)
        if new and i > 0:
            self.s[i - 1].append(("WAIT", (tuple(vm), tuple(lg))))
        return i
    @staticmethod
    def cls(x):
        if callable(x): return 0, 0
        k = Ins(x)
        if k.kind in ("salu", "wait", "nop", "ctl", "label", "smem"): return 0, (0 if k.kind == "label" else 1)
        if k.kind in ("dsread", "dswrite"): return 1, 1
        if k.kind in ("dma", "vload", "vstore", "vatomic"): return 1, 2
        return 2, k.cost // 4
    def used(self, g):
        return max(0, len(self.s[g]) - 1) + self.use[g]
    def at(self, g, x, tag=None, c=None):
        cl, n = self.cls(x)
        if c is not None: cl = c
        if cl == 0: self.s[g].append((x, tag))
        elif cl == 1: self.m[g].append((x, tag)); self.use[g] += n
        elif cl == 2: self.v[g].append((x, tag)); self.use[g] += n
        else: self.tail[g].append((x, tag))
    def fits(self, g, cl, n, cap):
        if cl == 0: return len(self.s[g]) == 0 or (self.used(g) + 1 <= cap and not any(Ins(t).kind != "dsread" for t, _ in self.m[g]))
        if cl == 1 and n == 2: return self.used(g) + 2 <= cap and not any(Ins(t).kind != "dsread" for t, _ in self.m[g])
        return self.used(g) + n <= cap
    def spread(self, ops, g0, g1, strict_after=None):
        items = [(o, None) if (isinstance(o, str) or callable(o)) else o for o in ops]
        info = [self.cls(t) for t, _ in items]
        C = sum(n for cl, n in info if cl != 0)
        cap = {g: 2 for g in range(g0, g1)}
        free = lambda: sum(max(0, cap[g] - self.used(g)) for g in range(g0, g1))
        E = C - free()
        lvl = 0
        while E > 0:
            n = g1 - g0; k = min(E, n)
            for q in range(k): cap[g0 + (q * n) // k] += 1
            E = C - free(); lvl += 1
        F = free()
        cumfree = []; acc = 0
        for g in range(g0, g1):
            acc += max(0, cap[g] - self.used(g)); cumfree.append(acc)
        done = 0; last = g0; lastcl = -1; lastm0 = -1; over = 0
        nS = sum(1 for cl, n in info if cl == 0)
        for idx, ((t, tag), (cl, n)) in enumerate(zip(items, info)):
            if C:
                tgt = done * F / C
                g = g0
                while g < g1 - 1 and cumfree[g - g0] <= tgt - 1e-9 and cumfree[g - g0] < F: g += 1
                if cl == 0: g = max(g0, g - 2)
            else:
                g = g0 + idx * (g1 - g0) // len(items)
            g = max(g, last + (1 if cl < lastcl else 0))
            if isinstance(t, str) and " lds" in t: g = max(g, lastm0 + 1)
            gg = g
            while gg < g1 and not self.fits(gg, cl, n, cap[gg]): gg += 1
            if gg >= g1 or gg > g + 6:
                gg = min(g, g1 - 1); over += 1
                if cl < lastcl and gg <= last:
                    self.tail[gg].append((t, tag)); self.use[gg] += n; last = gg; lastcl = 3; done += n if cl else 0
                    continue
            if lastcl == 3 and gg == last:
                self.tail[gg].append((t, tag)); self.use[gg] += n
            else:
                self.at(gg, t, tag); lastcl = cl
            if isinstance(t, str) and t.startswith("s_add_u32 m0"): lastm0 = gg
            last = gg; done += n if cl else 0
        return last
    def emit(self, P, i0=0, i1=None):
        for i in range(i0, len(self.M) if i1 is None else i1):
            t, vm, lg = self.M[i]
            P.wait(vm=vm, lg=lg)
            P(t)
            for (x, tag) in self.s[i] + self.m[i] + self.v[i] + self.tail[i]:
                if x == "WAIT": P.wait(vm=tag[0], lg=tag[1])
                elif callable(x): x(P)
                else: P(x, tag)
    def est(self, i0=0, i1=None):
        return sum(16 + 4 * max(0, self.used(g) - 2) for g in range(i0, len(self.M) if i1 is None else i1))
```

```python
import sys, math, struct
from asmlib import *

import os
_SH = int(os.environ.get("WSSHIFT", "0")) << 20
XN_OFF = 0
FLAG_OFF = 3 << 20
ACT_OFF = (4 << 20) + _SH
PART_OFF = (44 << 20) + _SH
WS_USED = (64 << 20) + _SH
STAMP_OFF = 0xF000000
def f2u(x): return struct.unpack("<I", struct.pack("<f", x))[0]
LOG2E = 1.4426950408889634
MF = "v_mfma_f32_16x16x32_bf16"

class Opt:
    group = 2
    stamps = False
    thr = 1024.0
    gpub = 112
    gpoll = 80
    prefetch = True
    sc = " sc1"
    noepi = False
    nodma = False
    nobar = False
    nostore = False
    pro_gap = 40
    lead = 96
    scl = ' sc1'
    nob = False
    now = False
    map1 = '4x8'
    sset = '1'
    wpre = True
    ghold = 1
opt = Opt()

def srd(P, d, lo, hi, nbytes):
    P(f"s_mov_b32 s{d}, s{lo}"); P(f"s_and_b32 s{d+1}, s{hi}, 0xffff"); P(f"s_mov_b32 s{d+2}, {nbytes}"); P(f"s_mov_b32 s{d+3}, 0x20000")
def kdesc(k, vgpr, accum, sgpr=102):
    return f""".section .rodata,"a"
.p2align 6
.amdhsa_kernel {k}
  .amdhsa_next_free_vgpr {vgpr}
  .amdhsa_next_free_sgpr {sgpr}
  .amdhsa_accum_offset {accum}
  .amdhsa_group_segment_fixed_size 0
  .amdhsa_kernarg_size 96
  .amdhsa_user_sgpr_count 2
  .amdhsa_user_sgpr_kernarg_segment_ptr 1
  .amdhsa_system_sgpr_workgroup_id_x 1
  .amdhsa_float_denorm_mode_32 3
.end_amdhsa_kernel
.text
"""
def khead(k): return f".globl {k}\n.p2align 8\n.type {k},@function\n{k}:\n"

class Stamps:
    def __init__(self, kidx): self.n = 0; self.kidx = kidx
    def mark(self, P, real=False, idx=None, sets="12"):
        if not opt.stamps or opt.sset not in sets: return
        if idx is None: idx = self.n; self.n += 1
        P(f"{'s_memrealtime' if real else 's_memtime'} s[100:101]"); P("s_waitcnt lgkmcnt(0)"); P(f"s_mov_b32 s{84+idx}, s100")
        assert idx < 16
    def flush(self, P, wsrd, vt):
        if not opt.stamps: return
        P(f"s_mov_b32 s{wsrd+2}, 0x10000000"); P(f"s_lshl_b32 s100, s2, 6"); P(f"s_add_u32 s100, s100, {STAMP_OFF + self.kidx * 65536}")
        for i in range(self.n):
            P(f"v_mov_b32 v{vt}, s{84+i}"); P(f"buffer_store_dword v{vt}, off, s[{wsrd}:{wsrd+3}], s100 offset:{4*i}"); P("s_waitcnt vmcnt(0)")

def decode_ids(P):
    P("s_and_b32 s6, s2, 7"); P("s_lshr_b32 s7, s2, 3")
    if opt.map1 == "8x4":
        P("s_and_b32 s4, s7, 7"); P("s_and_b32 s5, s6, 3"); P("s_lshl_b32 s5, s5, 3"); P("s_lshr_b32 s72, s6, 2"); P("s_lshl_b32 s72, s72, 2"); P("s_add_u32 s5, s5, s72")
        P("s_lshr_b32 s72, s7, 3"); P("s_add_u32 s5, s5, s72")
        return
    P("s_and_b32 s4, s6, 1"); P("s_lshl_b32 s4, s4, 2"); P("s_and_b32 s72, s7, 3"); P("s_add_u32 s4, s4, s72")
    P("s_lshr_b32 s5, s6, 1"); P("s_lshl_b32 s5, s5, 3"); P("s_lshr_b32 s72, s7, 2"); P("s_add_u32 s5, s5, s72")

def gen_k0(code_bytes):
    P = Prog(); st = Stamps(0)
    P("s_cmp_ge_u32 s2, 256"); P("s_cbranch_scc1 L_k0_end")
    st.mark(P, True); st.mark(P)
    P("s_load_dwordx2 s[4:5], s[0:1], 0"); P("s_load_dwordx2 s[6:7], s[0:1], 88"); P("s_load_dwordx4 s[20:23], s[0:1], 48")
    P("v_lshrrev_b32 v1, 6, v0"); P("s_nop 0"); P("v_readfirstlane_b32 s3, v1"); P("s_nop 1"); P("s_cmp_lg_u32 s3, 0"); P("s_cbranch_scc1 L_k0_pf")
    P("v_and_b32 v1, 7, v0"); P("v_lshrrev_b32 v2, 3, v0")
    P("s_movk_i32 s16, 1152"); P("v_mul_lo_u32 v3, v1, s16"); P("v_lshl_add_u32 v3, v2, 4, v3")
    P("s_mul_i32 s17, s2, 9216")
    P("v_lshrrev_b32 v4, 2, v2"); P("v_lshlrev_b32 v4, 10, v4"); P("v_and_b32 v5, 3, v2"); P("v_lshl_add_u32 v4, v5, 8, v4")
    P("v_lshl_add_u32 v4, v1, 4, v4")
    P("s_lshr_b32 s18, s2, 1"); P("s_mul_i32 s18, s18, 18432"); P("s_and_b32 s19, s2, 1"); P("s_lshl_b32 s19, s19, 7"); P("s_add_u32 s18, s18, s19")
    P("s_waitcnt lgkmcnt(0)")
    srd(P, 8, 4, 5, 2359296); srd(P, 12, 6, 7, WS_USED)
    X = 8
    for i in range(9): P(f"buffer_load_dwordx4 {v(X+4*i,4)}, v3, s[8:11], s17 offen offset:{128*i}", tag=("x", i))
    P("v_lshlrev_b32 v6, 2, v0"); P("v_mov_b32 v7, 0"); P("s_lshl_b32 s19, s2, 8"); P(f"s_add_u32 s19, s19, {FLAG_OFF}")
    P("buffer_store_dword v7, v6, s[12:15], s19 offen")
    F = 48
    for i in range(9):
        P.wait(vm=[("x", i)])
        for j in range(4):
            P(f"v_lshlrev_b32 v{F+8*i+2*j}, 16, v{X+4*i+j}"); P(f"v_and_b32 v{F+8*i+2*j+1}, 0xffff0000, v{X+4*i+j}")
        for j in range(8):
            if i == 0 and j < 4: P(f"v_mov_b32 v{120+j}, v{F+j}")
            else: P(f"v_add_f32 v{120+(j&3)}, v{120+(j&3)}, v{F+8*i+j}")
    def reduce8(r):
        P(f"v_add_f32 v{r}, v{r}, v{r+1}"); P(f"v_add_f32 v{r+2}, v{r+2}, v{r+3}"); P("s_nop 0"); P(f"v_add_f32 v{r}, v{r}, v{r+2}")
        P("s_nop 1"); P(f"v_add_f32_dpp v{r}, v{r}, v{r} row_ror:8 row_mask:0xf bank_mask:0xf")
        P(f"v_mov_b32 v{r+1}, v{r}"); P("s_nop 1"); P(f"v_permlane16_swap_b32 v{r}, v{r+1}"); P("s_nop 1"); P(f"v_add_f32 v{r}, v{r}, v{r+1}")
        P(f"v_mov_b32 v{r+1}, v{r}"); P("s_nop 1"); P(f"v_permlane32_swap_b32 v{r}, v{r+1}"); P("s_nop 1"); P(f"v_add_f32 v{r}, v{r}, v{r+1}")
    reduce8(120)
    P(f"v_mul_f32 v124, {hex(f2u(1.0/576))}, v120")
    for k in range(72):
        P(f"v_sub_f32 v{126+(k&1)}, v{F+k}, v124")
        if k < 4: P(f"v_mul_f32 v{120+k}, v{126+(k&1)}, v{126+(k&1)}")
        else: P(f"v_fmac_f32 v{120+(k&3)}, v{126+(k&1)}, v{126+(k&1)}")
    reduce8(120)
    P(f"v_mul_f32 v120, {hex(f2u(1.0/576))}, v120")
    P("v_cvt_pk_bf16_f32 v120, v120, v124")
    P("v_and_b32 v124, 0xffff0000, v120"); P("v_lshlrev_b32 v120, 16, v120")
    P(f"v_add_f32 v120, {hex(f2u(1e-5))}, v120"); P("v_cvt_pk_bf16_f32 v120, v120, v120"); P("v_lshlrev_b32 v120, 16, v120")
    P("v_sqrt_f32 v120, v120"); P("s_nop 0"); P("v_cvt_pk_bf16_f32 v120, v120, v120"); P("v_lshlrev_b32 v120, 16, v120")
    P("v_rcp_f32 v125, v120"); P("s_nop 0")
    for i in range(9):
        for j in range(8): P(f"v_sub_f32 v{F+8*i+j}, v{F+8*i+j}, v124")
        for j in range(4): P(f"v_cvt_pk_bf16_f32 v{X+4*i+j}, v{F+8*i+2*j}, v{F+8*i+2*j+1}")
        for j in range(4):
            P(f"v_lshlrev_b32 v{F+8*i+2*j}, 16, v{X+4*i+j}"); P(f"v_and_b32 v{F+8*i+2*j+1}, 0xffff0000, v{X+4*i+j}")
        for j in range(8): P(f"v_mul_f32 v{F+8*i+j}, v{F+8*i+j}, v125")
        for j in range(4): P(f"v_cvt_pk_bf16_f32 v{X+4*i+j}, v{F+8*i+2*j}, v{F+8*i+2*j+1}")
        if i % 2 == 0 and i > 0: P("s_add_u32 s18, s18, 4096")
        P(f"buffer_store_dwordx4 {v(X+4*i,4)}, v4, s[12:15], s18 offen offset:{2048*(i&1)}")
    if opt.stamps:
        P("s_waitcnt vmcnt(0)"); st.mark(P); st.mark(P, True); st.flush(P, 12, 126)
    P("s_endpgm")
    Q = Prog()
    Q("L_k0_pf:")
    if opt.prefetch:
        Q("s_waitcnt lgkmcnt(0)")
        decode_ids(Q)
        srd(Q, 8, 20, 21, 5308416); srd(Q, 12, 22, 23, 5308416)
        Q("s_lshr_b32 s7, s5, 1"); Q("s_and_b32 s6, s5, 1"); Q("s_mul_i32 s16, s7, 576"); Q("s_add_u32 s17, s16, 256")
        Q("s_mul_i32 s18, s6, 320"); Q("s_add_u32 s18, s18, s16")
        nsh = 4 if opt.map1 == "4x8" else 8
        Q(f"s_and_b32 s19, s4, {nsh-1}"); Q(f"s_mul_i32 s19, s19, {576//nsh}")
        Q("v_subrev_u32 v1, 64, v0"); Q(f"v_min_u32 v2, {576//nsh-1}, v1"); Q("v_add_u32 v2, s19, v2"); Q("s_movk_i32 s19, 9216"); Q("v_mul_lo_u32 v2, v2, s19")
        for k, (sr, so) in enumerate(((8, 17), (12, 17), (8, 18), (12, 18))):
            Q(f"buffer_load_dword v{8+k}, v2, s[{sr}:{sr+3}], s{so} offen")
        nl = (code_bytes + 127) // 128
        per = (nl + 31) // 32
        Q("s_getpc_b64 s[24:25]"); Q("L_k0_pc:"); Q("s_add_u32 s24, s24, main_kernel-L_k0_pc"); Q("s_addc_u32 s25, s25, 0")
        Q("s_lshr_b32 s19, s2, 3"); Q(f"s_mul_i32 s19, s19, {per}"); Q(f"v_min_u32 v3, {per-1}, v1"); Q("v_add_u32 v3, s19, v3"); Q("s_mov_b32 s19, (L_code_end-main_kernel)/128"); Q(f"v_min_u32 v3, s19, v3"); Q("v_lshlrev_b32 v3, 7, v3")
        Q("global_load_dword v12, v3, s[24:25]")
        Q("s_waitcnt vmcnt(0)")
    Q("L_k0_end:"); Q("s_endpgm")
    return P, Q

def gen_main():
    P = Prog(); st = Stamps(1); P.optional = {("c", 95)}
    G = opt.group; NSLOT = 16; AHEAD = NSLOT // G - 2
    GST = list(range(0, 80, G)) + list(range(80, 96, 2))
    gof = lambda c: max(k for k, s_ in enumerate(GST) if s_ <= c)
    gch = lambda g: [c for c in range(95) if gof(c) == g]
    SC = opt.sc
    REMAP = {87: 0, 89: 1, 91: 2, 93: 0}
    def slot_addr(c): return (c & 1) * 65536 + (REMAP[c] if c in REMAP else (c >> 1) & 7) * 8192
    def prev_occ(c):
        for p in range(c - 1, -1, -1):
            if slot_addr(p) == slot_addr(c): return p
        return None
    sWS, sWG, sWU, sWQ, sK, sV, sW2 = 8, 12, 16, 20, 24, 28, 32
    sW1k, sW2k = 36, 37
    sXN = [38, 39, 40, 41]; sH = [42, 43, 44, 45]; sHs = [46, 47]; sO = [48, 49, 50, 51]
    sFcol, sFsh, sQb, sKVb = 52, 53, 54, 55
    sT = [56, 57, 58, 59]; sRet = 60; sC_nl2e, sC_qs, sSpin = 61, 62, 63
    sXp, sOp = 64, 66
    sBb, sRot, sWb, sLw, sRole, sFl, sFlo, sPF, sPFo, sPa, sPb, sGw, sTile, sMask, sEarly, sGb = range(68, 84)
    vOne, vLane16, vPoll, vF = 1, 2, 3, 4
    vQ0, vQ1, vPark = 5, 6, 7
    vFb = [[8, 9], [10, 11]]; vQb = [[12, 13], [14, 15]]
    vK0, vK1, vV0, vV1 = 16, 17, 18, 19
    vKb = [20, 21, 22, 23]; vVb = list(range(24, 32))
    vW = list(range(4, 13)); vRb = [13, 14, 15]; vB = [60, 61, 62, 63]
    vL, vTS = 32, 36
    vTmp = 40; AR = 64; SETA, SETB = 96, 160; XNV = 224
    PARK = 131072
    def xn1(tb, ks):
        i = ks * 4 + tb
        return a_(4 * i, 4) if i < 64 else v(XNV + 4 * (i - 64), 4)
    acc = lambda base, b, tb: base + 16 * b + 4 * tb
    L_ = 40

    P("s_cmp_ge_u32 s2, 256"); P("s_cbranch_scc1 L_main_end")
    st.mark(P, True); st.mark(P)
    P("s_load_dwordx2 s[98:99], s[0:1], 88")
    P("s_load_dwordx4 s[92:95], s[0:1], 24")
    P("s_load_dwordx4 s[88:91], s[0:1], 8")
    P("s_load_dwordx4 s[76:79], s[0:1], 48")
    P("s_load_dwordx2 s[96:97], s[0:1], 64")
    P(f"s_load_dwordx2 s[{sXp}:{sXp+1}], s[0:1], 0"); P(f"s_load_dwordx2 s[{sOp}:{sOp+1}], s[0:1], 72")
    P("v_lshrrev_b32 v1, 6, v0"); P(f"v_and_b32 v{L_}, 63, v0"); P("s_nop 0"); P("v_readfirstlane_b32 s3, v1")
    decode_ids(P)
    P(f"s_lshl_b32 s{sW1k}, s3, 10"); P("s_and_b32 s6, s5, 1"); P("s_lshr_b32 s7, s5, 1")
    P(f"v_lshlrev_b32 v{vLane16}, 4, v{L_}")
    P("s_lshl_b32 s100, s3, 4")
    P(f"v_lshrrev_b32 v41, 2, v{L_}"); P("v_add_u32 v42, s100, v41"); P("s_movk_i32 s101, 9216"); P("v_mul_lo_u32 v42, v42, s101")
    P(f"v_lshrrev_b32 v43, 1, v{L_}"); P("v_lshrrev_b32 v44, 3, v41"); P("v_xor_b32 v43, v43, v44"); P("v_and_b32 v43, 1, v43"); P("v_lshl_add_u32 v42, v43, 5, v42")
    P(f"v_and_b32 v43, 1, v{L_}"); P(f"v_lshl_add_u32 v{vF}, v43, 4, v42")
    P("s_lshl_b32 s58, s4, 4"); P("s_lshl_b32 s59, s3, 2"); P("s_add_u32 s60, s58, s59"); P("s_lshl_b32 s63, s6, 1")
    for t in range(4):
        P(f"s_xor_b32 s100, s63, {t}"); P("s_add_u32 s100, s100, s60"); P(f"s_mul_i32 s{sXN[t]}, s100, 18432")
    P(f"s_mul_i32 s{sFsh}, s7, 576"); P(f"s_mul_i32 s100, s6, 320"); P(f"s_add_u32 s{sFcol}, s{sFsh}, s100"); P(f"s_add_u32 s{sFsh}, s{sFsh}, 256")
    P("s_waitcnt lgkmcnt(0)")
    srd(P, sWS, 98, 99, WS_USED); srd(P, sWG, 76, 77, 5308416); srd(P, sWU, 78, 79, 5308416)

    chains = [dict(kind="F", base=SETA, tbs=[0, 1], col=("sh", 0), c0=0)]
    for n in range(4): chains.append(dict(kind="F", base=(SETB, SETA)[n & 1], tbs=[0, 1, 2, 3], col=("n", n), c0=9 + 9 * n))
    chains += [dict(kind="Q", base=SETB, tbs=[0, 1, 2, 3], qc=0, c0=45), dict(kind="Q", base=SETA, tbs=[0, 1, 2, 3], qc=1, c0=54)]
    KV0 = 63; NCH = 95
    tcount = [0]
    def nt():
        t = sT[tcount[0] & 3]; tcount[0] += 1; return t
    def dma(c):
        L = slot_addr(c); t = nt()
        if c < 45:
            ch = chains[c // 9]; ci = c % 9
            sb, off = (sFsh, 0) if ch["col"][0] == "sh" else (sFcol, 64 * ch["col"][1])
            so = f"s_add_u32 s{t}, s{sb}, {ci*64*9216 + off}"; mw, d2 = sW1k, 4096; r0 = r1 = vF; s0, s1 = sWG, sWU
        elif c < KV0:
            so = f"s_add_u32 s{t}, s{sQb}, {(c % 9)*64*8192 + 128*((c - 45) // 9)}"; mw, d2 = sW2k, 1024; r0, r1 = vQ0, vQ1; s0 = s1 = sWQ
        else:
            i = (c - KV0) >> 1; isv = (c - KV0) & 1
            r0, r1, s0 = (vV0, vV1, sV) if isv else (vK0, vK1, sK); s1 = s0
            so = f"s_add_u32 s{t}, s{sKVb}, {i*8192}"; mw, d2 = sW2k, 1024
        return [(f"s_add_u32 m0, s{mw}, {L}", None), (so, None), (f"buffer_load_dwordx4 v{r0}, s[{s0}:{s0+3}], s{t} offen lds", ("c", c)),
                (f"s_add_u32 m0, s{mw}, {L+d2}", None), (f"buffer_load_dwordx4 v{r1}, s[{s1}:{s1+3}], s{t} offen lds", ("c", c))]
    def xnload(tb, ks):
        t = nt()
        return [(f"s_add_u32 s{t}, s{sXN[tb]}, {(ks>>2)*4096}", None),
                (f"buffer_load_dwordx4 {xn1(tb, ks)}, v{vLane16}, s[{sWS}:{sWS+3}], s{t} offen offset:{(ks&3)*1024}", ("x", tb, ks))]
    PRE = AHEAD * G + G
    units = []
    for ci in range(9):
        units.append((16 * (ci // G * G) - 8, (dma, ci)))
        for s_ in range(2):
            for tb in (0, 1): units.append((16 * ci, (xnload, tb, 2 * ci + s_)))
    for ci in range(9):
        c = 9 + ci
        if c < PRE:
            cg = c // G * G
            units.append(((16 * cg if cg < 9 else 144 + 32 * (cg - 9)) - 16, (dma, c)))
        for s_ in range(2):
            for tb in (2, 3): units.append((144 + 32 * ci, (xnload, tb, 2 * ci + s_)))
    units.sort(key=lambda u: u[0])
    npro = sum(1 for u in units if u[0] < opt.pro_gap)
    for _, u in units[:npro]:
        for x in u[0](*u[1:]): P(*x)
    late = units[npro:]
    srd(P, sK, 88, 89, 8388608); srd(P, sV, 90, 91, 8388608); srd(P, sWQ, 92, 93, 4718592)
    P(f"s_lshl_b32 s{sW2k}, s3, 11"); P(f"s_lshl_b32 s{sQb}, s5, 8")
    P("s_mul_i32 s88, s7, 9"); P("s_mul_i32 s89, s6, 5"); P("s_add_u32 s89, s89, s88")
    for t in range(4):
        P(f"s_xor_b32 s100, s63, {t}"); P("s_add_u32 s100, s100, s60"); P(f"s_mul_i32 s100, s100, 272")
        P(f"s_add_u32 s101, s100, s89"); P(f"s_lshl_b32 s101, s101, 10"); P(f"s_add_u32 s{sH[t]}, s101, {ACT_OFF + 128*1024}")
        if t < 2: P(f"s_add_u32 s101, s100, s88"); P(f"s_lshl_b32 s101, s101, 10"); P(f"s_add_u32 s{sHs[t]}, s101, {ACT_OFF + 132*1024}")
        P(f"s_lshl_b32 s101, s5, 2"); P("s_add_u32 s101, s101, s100"); P("s_lshl_b32 s101, s101, 10"); P(f"s_add_u32 s{sO[t]}, s101, {ACT_OFF}")
    P(f"s_mul_i32 s{sKVb}, s7, 524288"); P(f"s_add_u32 s{sKVb}, s{sKVb}, {1536*256}")
    P(f"s_mov_b32 s{sC_nl2e}, {hex(f2u(-LOG2E))}"); P(f"s_mov_b32 s{sC_qs}, {hex(f2u(LOG2E * 128 ** -0.5))}")
    P("s_lshr_b32 s88, s5, 3"); P("s_and_b32 s89, s5, 7"); P(f"s_lshr_b32 s{sRole}, s89, 2"); P("s_and_b32 s90, s5, 3")
    P("s_mul_i32 s100, s88, 32"); P("s_mul_i32 s101, s88, 36"); P("s_add_u32 s91, s101, 128")
    P(f"s_cmp_eq_u32 s{sRole}, 0")
    P(f"s_cselect_b32 s{sW2}, s94, s96"); P(f"s_cselect_b32 s{sW2+1}, s95, s97"); P(f"s_mov_b32 s{sW2+2}, 5308416"); P(f"s_cselect_b32 s{sW2+2}, 4718592, s{sW2+2}")
    P(f"s_cselect_b32 s101, s100, s101"); P(f"s_cselect_b32 s91, s100, s91")
    P(f"s_cselect_b32 s{sRot}, s89, 0"); P(f"s_cselect_b32 s{sMask}, 7, 15"); P(f"s_cselect_b32 s{sEarly}, 0x10000000, 0")
    P(f"s_and_b32 s{sW2+1}, s{sW2+1}, 0xffff"); P(f"s_mov_b32 s{sW2+3}, 0x20000")
    P("s_mul_i32 s100, s60, 272"); P("s_add_u32 s100, s100, s91"); P("s_lshl_b32 s100, s100, 10"); P(f"s_add_u32 s{sBb}, s100, {ACT_OFF}"); P(f"s_add_u32 s{sEarly}, s{sEarly}, s{sBb}")
    P("s_add_u32 s101, s101, s3"); P(f"s_mul_i32 s101, s101, {32*1152}"); P("s_mul_i32 s100, s90, 288"); P(f"s_add_u32 s{sWb}, s101, s100")
    P(f"s_mul_i32 s{sLw}, s3, 9216")
    nsh = 4 if opt.map1 == "4x8" else 8
    P(f"s_sub_u32 s{sGb}, s101, s{sLw}"); P(f"s_mul_i32 s100, s{sLw}, 3"); P(f"s_sub_u32 s{sGb}, s{sGb}, s100")
    P(f"s_and_b32 s100, s4, {nsh-1}"); P("s_lshl_b32 s100, s100, 2"); P("s_add_u32 s100, s100, s90")
    P(f"s_mul_i32 s101, s{sRole}, {72*128*4//nsh}"); P(f"s_add_u32 s101, s101, {576*128*4//nsh}"); P("s_mul_i32 s100, s100, s101"); P(f"s_add_u32 s{sGb}, s{sGb}, s100")
    P("s_lshl_b32 s100, s4, 2"); P("s_add_u32 s101, s100, s88"); P("s_lshl_b32 s101, s101, 8"); P(f"s_add_u32 s{sFl}, s101, {FLAG_OFF}")
    P("s_lshl_b32 s101, s89, 2"); P(f"s_add_u32 s{sFlo}, s{sFl}, s101")
    P(f"s_add_u32 s{sTile}, s100, s90"); P(f"s_lshl_b32 s101, s{sTile}, 8"); P(f"s_add_u32 s{sPF}, s101, {FLAG_OFF + 8192}")
    P(f"s_lshl_b32 s101, s{sRole}, 7"); P(f"s_add_u32 s{sPFo}, s{sPF}, s101"); P("s_lshl_b32 s101, s88, 2"); P(f"s_add_u32 s{sPFo}, s{sPFo}, s101")
    P(f"s_lshl_b32 s100, s{sRole}, 2"); P("s_add_u32 s7, s88, s100")
    P(f"s_lshl_b32 s100, s{sTile}, 3"); P("s_add_u32 s100, s100, s7"); P("s_lshl_b32 s100, s100, 2"); P("s_add_u32 s100, s100, s3"); P("s_mul_i32 s100, s100, 18432")
    P(f"s_add_u32 s100, s100, {PART_OFF}"); P("s_lshl_b32 s101, s6, 10"); P(f"s_add_u32 s{sPa}, s100, s101"); P("s_xor_b32 s101, s101, 1024"); P(f"s_add_u32 s{sPb}, s100, s101")
    P(f"v_mov_b32 v{vOne}, 1"); P(f"v_and_b32 v{vPoll}, 7, v{L_}"); P(f"v_lshlrev_b32 v{vPoll}, 2, v{vPoll}")
    P(f"s_mov_b32 s100, {(2**32 + 17) // 18}"); P("s_movk_i32 s101, 1152")
    for i in range(9):
        P(f"v_add_u32 v41, {64*i}, v{L_}"); P("v_mul_hi_u32 v42, v41, s100"); P("v_mul_u32_u24 v43, 18, v42"); P("v_sub_u32 v43, v41, v43")
        P("v_mul_lo_u32 v42, v42, s101"); P(f"v_lshl_add_u32 v{48+i}, v43, 4, v42")
    P(f"v_lshrrev_b32 v42, 2, v{L_}"); P("s_movk_i32 s101, 288"); P("v_mul_lo_u32 v42, v42, s101"); P(f"v_and_b32 v43, 3, v{L_}"); P("v_lshl_add_u32 v42, v43, 3, v42")
    for k in range(3): P(f"v_add_u32 v{57+k}, {16384 + 65536*k}, v42")
    for t in range(4):
        P(f"s_xor_b32 s100, s63, {t}"); P(f"s_mul_i32 s100, s100, {272*1024}"); P(f"v_add_u32 v{60+t}, s100, v{vLane16}")
    P(f"v_lshlrev_b32 v{vPark}, 6, v0"); P(f"v_add_u32 v{vPark}, {PARK}, v{vPark}")
    for k in range(4): P(f"ds_write_b128 v{vPark}, {v(48+4*k,4)} offset:{16*k}")
    P("s_lshl_b32 s100, s3, 4")
    P(f"v_lshrrev_b32 v41, 3, v{L_}"); P("v_add_u32 v42, s100, v41"); P("v_lshlrev_b32 v42, 13, v42")
    P(f"v_lshrrev_b32 v43, 2, v{L_}"); P("v_lshrrev_b32 v44, 1, v41"); P("v_xor_b32 v43, v43, v44"); P("v_and_b32 v43, 1, v43"); P("v_lshl_add_u32 v42, v43, 6, v42")
    P(f"v_and_b32 v43, 3, v{L_}"); P(f"v_lshl_add_u32 v{vQ0}, v43, 4, v42"); P(f"v_add_u32 v{vQ1}, 0x10000, v{vQ0}")
    P(f"v_lshrrev_b32 v41, 4, v{L_}"); P("s_lshl_b32 s100, s3, 3"); P("v_add_u32 v41, s100, v41"); P(f"v_and_b32 v42, 15, v{L_}")
    for i, (rk, rv) in enumerate(((vK0, vV0), (vK1, vV1))):
        if i: P("v_add_u32 v41, 4, v41")
        P("v_xor_b32 v43, v42, v41"); P("v_and_b32 v43, 15, v43"); P("v_lshlrev_b32 v43, 4, v43"); P(f"v_lshl_add_u32 v{rk}, v41, 8, v43")
        P("v_lshrrev_b32 v43, 1, v42"); P("v_xor_b32 v43, v43, v41"); P("v_and_b32 v43, 7, v43"); P("v_lshlrev_b32 v43, 5, v43")
        P("v_and_b32 v44, 1, v42"); P("v_lshl_add_u32 v43, v44, 4, v43"); P(f"v_lshl_add_u32 v{rv}, v41, 8, v43")
    P(f"v_lshrrev_b32 v41, 4, v{L_}"); P(f"v_bfe_u32 v42, v{L_}, 2, 2"); P(f"v_and_b32 v43, 3, v{L_}")
    P("v_lshl_add_u32 v44, v41, 3, v42")
    P("v_lshlrev_b32 v45, 6, v44"); P("v_lshl_add_u32 v45, v43, 3, v45"); P("v_and_b32 v46, 1, v41"); P(f"v_lshl_add_u32 v{vFb[0][0]}, v46, 5, v45")
    P(f"v_xor_b32 v{vFb[0][1]}, 32, v{vFb[0][0]}"); P(f"v_add_u32 v{vFb[1][0]}, 0x10000, v{vFb[0][0]}"); P(f"v_add_u32 v{vFb[1][1]}, 0x10000, v{vFb[0][1]}")
    P("v_lshlrev_b32 v45, 7, v44"); P("v_lshl_add_u32 v45, v43, 4, v45"); P("v_lshrrev_b32 v46, 1, v42"); P(f"v_lshl_add_u32 v{vQb[0][0]}, v46, 6, v45")
    P(f"v_xor_b32 v{vQb[0][1]}, 64, v{vQb[0][0]}"); P(f"v_add_u32 v{vQb[1][0]}, 0x10000, v{vQb[0][0]}"); P(f"v_add_u32 v{vQb[1][1]}, 0x10000, v{vQb[0][1]}")
    P(f"v_and_b32 v45, 15, v{L_}"); P("v_xor_b32 v46, v41, v45"); P("v_lshlrev_b32 v46, 4, v46"); P(f"v_lshl_add_u32 v46, v45, 8, v46"); P(f"v_add_u32 v{vKb[0]}, 0x10000, v46")
    for s_ in range(1, 4): P(f"v_xor_b32 v{vKb[s_]}, {64*s_}, v{vKb[0]}")
    P("v_lshl_add_u32 v44, v41, 2, v42"); P("v_and_b32 v45, 7, v44"); P("v_lshlrev_b32 v45, 5, v45"); P("v_lshl_add_u32 v45, v44, 8, v45")
    P(f"v_lshl_add_u32 v{vVb[0]}, v43, 3, v45")
    for d in range(1, 8): P(f"v_xor_b32 v{vVb[d]}, {32*d}, v{vVb[0]}")
    P("s_waitcnt lgkmcnt(0)")
    st.mark(P, sets="1")

    S = Sched2(); wins = []; fragc = [0]
    def add_window(mf, reads, chunk, att=False):
        start = len(S.M)
        for (t, vm, lg) in mf: S.mfma(t, vm, lg)
        wins.append(dict(start=start, n=len(mf), reads=reads, chunk=chunk, att=att))
    span = {}
    def add_chain(cn):
        ch = chains[cn]; c_start = len(S.M); xn = xn1
        for ci in range(9):
            c = ch["c0"] + ci; L = slot_addr(c); half = L >> 16; Lo = L & 0xffff
            for b in range(4):
                fr = [AR + 4 * ((fragc[0] + s_) & 7) for s_ in range(2)]; fragc[0] += 2
                reads = []
                for s_ in range(2):
                    for t in range(2):
                        if ch["kind"] == "F": base = vFb[half][b & 1]; off = Lo + (b >> 1) * 4096 + (32 * s_ + 4 * t) * 64
                        else: base = vQb[half][b >> 1]; off = Lo + (32 * s_ + 4 * t) * 128 + 8 * (b & 1)
                        reads.append((f"ds_read_b64_tr_b16 {v(fr[s_]+2*t,2)}, v{base} offset:{off}", ("r", c, b)))
                mf = []
                for tb in ch["tbs"]:
                    for s_ in range(2):
                        ks = 2 * ci + s_; A = acc(ch["base"], b, tb)
                        vm = [("x", tb2, 2 * ci + s2) for tb2 in ch["tbs"] for s2 in range(2)] if (b == 0) else []
                        mf.append((f"{MF} {v(A,4)}, {v(fr[s_],4)}, {xn(tb, ks)}, {'0' if ks == 0 else v(A, 4)}", vm, [("r", c, b)]))
                add_window(mf, reads, c)
        span[cn] = (c_start, len(S.M))
    X_, Y_ = SETB, SETA
    def Qf(s_, tb): return acc(X_, 2 * s_, tb) if s_ < 2 else acc(Y_, 2 * (s_ - 2), tb)
    def Sr(p, kb, tb): return (acc(X_, 1 + 2 * kb, tb) if p == 0 else XNV + 16 * kb + 4 * tb)
    def Pr(p, tb): return acc(Y_, 1 + 2 * p, tb)
    NEGM = AR + 16; vThr = vTmp + 9; KF = 128; VF = 160
    ER = list(range(40, 48)) + list(range(56, 60))
    def Or(db, tb): return 16 * db + 4 * tb
    def qk_window(i, kb, czero):
        c = KV0 + 2 * i; Lo = slot_addr(c) & 0xffff
        reads = [(f"ds_read_b128 {a_(KF+16*kb+4*s_,4)}, v{vKb[s_]} offset:{Lo + 4096*kb}", ("k", i, kb)) for s_ in range(4)]
        mf = []
        for tb in range(4):
            for s_ in range(4):
                D = v(Sr(i & 1, kb, tb), 4)
                Cc = D if s_ else ("0" if czero else v(NEGM + 4 * tb, 4))
                mf.append((f"{MF} {D}, {a_(KF+16*kb+4*s_,4)}, {v(Qf(s_, tb),4)}, {Cc}", [], [("k", i, kb)]))
        add_window(mf, reads, c, True)
    def pv_window(i, h):
        c = KV0 + 2 * i + 1; Lo = slot_addr(c) & 0xffff
        reads = []; mf = []
        for db in range(4 * h, 4 * h + 4):
            for t in range(2): reads.append((f"ds_read_b64_tr_b16 {a_(VF+4*db+2*t,2)}, v{vVb[db]} offset:{Lo + 4096*t}", ("v", i, h)))
            for tb in range(4):
                D = a_(Or(db, tb), 4)
                mf.append((f"{MF} {D}, {a_(VF+4*db,4)}, {v(Pr(i&1, tb),4)}, {'0' if i == 0 else D}", [], [("v", i, h)]))
        add_window(mf, reads, c, True)
    for cn in range(7): add_chain(cn)
    att0 = len(S.M); it_span = []
    qk_window(0, 0, True); qk_window(0, 1, True)
    s0 = len(S.M); qk_window(1, 0, True); qk_window(1, 1, True); it_span.append((s0, len(S.M)))
    for i in range(1, 16):
        s0 = len(S.M)
        if i < 15: qk_window(i + 1, 0, False)
        pv_window(i - 1, 0)
        if i < 15: qk_window(i + 1, 1, False)
        pv_window(i - 1, 1)
        it_span.append((s0, len(S.M)))
    pv15 = len(S.M); pv_window(15, 0); pv_window(15, 1)
    att1 = len(S.M)
    fragc[0] = 0
    NM = len(S.M)
    head_reads = []
    for w, W in enumerate(wins):
        if w < 2: head_reads.append(W); continue
        W["g0"] = wins[w - 2]["start"]; W["g1"] = W["g0"] + wins[w - 2]["n"]
    lastuse = {}
    for w, W in enumerate(wins):
        if W["att"]:
            key = W["reads"][0][0].split()[1]
            if key in lastuse:
                pw = wins[lastuse[key]]
                if W["g0"] < pw["start"] + pw["n"] - 1:
                    W["g0"] = pw["start"] + pw["n"] - 1
                    W["g1"] = wins[lastuse[key] + 1]["start"] + wins[lastuse[key] + 1]["n"] - 4
            lastuse[key] = w
    seen = set(); bar_gap = {}; extra_wait = {}
    def mkwait(g): return lambda P_: P_.wait(vm=[("c", c) for c in gch(g)] + extra_wait.get(g, []))
    for W in wins:
        g = gof(W["chunk"])
        for gg in range(g + 1):
            if gg not in seen:
                seen.add(gg)
                if "g0" in W:
                    S.at(W["g0"] - 1, mkwait(gg)); S.at(W["g0"], "s_barrier" if not opt.nobar else "s_nop 0"); bar_gap[gg] = W["g0"]
                else: bar_gap[gg] = -1
        if "g0" in W:
            n = W["g1"] - W["g0"]; nr = len(W["reads"])
            for k, (t, tag) in enumerate(W["reads"]):
                g_ = W["g0"] + (k * n) // nr
                if att0 <= g_ < att1 and n >= 2 * nr - 1 and ((g_ - att0) & 1) == 0 and g_ + 1 < W["start"] - 1: g_ += 1
                S.at(g_, t, tag)
    last_use_gap = {}
    for W in wins: last_use_gap[W["chunk"]] = W["start"] + W["n"] - 1

    def p2slot(g): return 16384 + ((3 - g) & 3) * 36864
    def p2_dma(g, gonly=False):
        if g >= 9: return []
        out = [(x, None) for x in (f"s_add_u32 s{sGw}, s{sRot}, {g}", f"s_and_b32 s{sGw}, s{sGw}, s{sMask}", f"s_mul_i32 s{sGw}, s{sGw}, {128*1152}",
                                   f"s_add_u32 s{sGw}, s{sGw}, s{sWb}" if not opt.now else f"s_mov_b32 s{sGw}, 0x10000000")]
        if gonly: out += [(f"s_sub_u32 s100, s{sEarly}, s{sBb}", None), (f"s_add_u32 s{sGw}, s{sGw}, s100", None)]
        for i in range(9):
            out.append((f"s_add_u32 m0, s{sLw}, {p2slot(g) + 1024*i}", None))
            out.append((f"buffer_load_dwordx4 v{vW[i]}, s[{sW2}:{sW2+3}], s{sGw} offen lds", ("w", g)))
        return out
    BS = [("a", 192), ("a", 208), ("a", 224), ("a", 240), ("v", 160), ("v", 192), ("v", 176), ("v", 208), ("a", 144), ("a", 160), ("a", 176), ("v", 224), ("v", 240)]
    def bf(c, tb):
        f, r = BS[c % 13]; return R(f, r + 4 * tb, 4)
    def p2_bload(cs, early=False):
        out = []; lastg = None
        for c in cs:
            if c >= 36: continue
            if not early and (c >> 2) != lastg:
                lastg = c >> 2
                out += [(x, None) for x in (f"s_add_u32 s{sGb}, s{sRot}, {lastg}", f"s_and_b32 s{sGb}, s{sGb}, s{sMask}", f"s_lshl_b32 s{sGb}, s{sGb}, 12",
                                            f"s_add_u32 s{sGb}, s{sGb}, s{sBb}" if not opt.nob else f"s_mov_b32 s{sGb}, 0x10000000")]
            if early and c == 4: out.append((f"s_add_u32 s{sEarly}, s{sEarly}, 4096", None))
            for tb in range(4): out.append((f"buffer_load_dwordx4 {bf(c, tb)}, v{vB[tb]}, s[{sWS}:{sWS+3}], s{sEarly if early else sGb} offen offset:{1024*(c&3)}{opt.scl}", ("b", c, tb)))
        return out
    spins = []
    def poll_issue(sline, off, vt, tag): return (f"buffer_load_dword v{vt}, v{vPoll}, s[{sWS}:{sWS+3}], s{sline} offen offset:{off} sc1", tag)
    def spin_code(name, sline, off, vt):
        spins.append(f"""L_spin_{name}:
s_mov_b32 s{sSpin}, 0x40000
L_spin2_{name}:
buffer_load_dword v{vt}, v{vPoll}, s[{sWS}:{sWS+3}], s{sline} offen offset:{off} sc1
s_waitcnt vmcnt(0)
v_cmp_ne_u32 vcc, 1, v{vt}
s_sub_u32 s{sSpin}, s{sSpin}, 1
s_cbranch_scc1 L_ok_{name}
s_nop 0
s_cbranch_vccz L_ok_{name}
s_sleep 1
s_branch L_spin2_{name}""")
    def poll_check(S_, g, name, sline, off, vt, tag):
        S_.at(g, lambda P_: P_.wait(vm=[tag])); S_.at(g, f"v_cmp_ne_u32 vcc, 1, v{vt}")
        S_.at(g + 2, f"s_cbranch_vccnz L_spin_{name}"); S_.at(g + 2, f"L_ok_{name}:", c=0)

    vP = 0
    gchk = it_span[11][0] + 30
    def wpre(k): return [(f"s_add_u32 s{sGb}, s{sGb}, 32768", None) if k else (f"s_nop 0", None), (f"buffer_load_dword v55, v54, s[{sW2}:{sW2+3}], s{sGb} offen", None)]
    timed = [(it_span[2 + 2 * k][0] + 8, (wpre, k)) for k in range(3)] if opt.wpre else []
    TW0 = min(b for b in bar_gap.values() if b > last_use_gap[79]) + 1
    assert it_span[7][0] < TW0 < it_span[10][0] + 20
    timed += [(TW0, (p2_dma, 0)), (it_span[10][0] + 20, (lambda: [poll_issue(sFl, 0, vP, ("f1",))],))]
    for c in range(4): timed.append((gchk + 3 + 24 * c, (p2_bload, [c], True)))
    timed.append((it_span[13][0] + 24, (p2_dma, 1, True)))
    timed += [(it_span[15][0], (p2_bload, [4, 5], True)), (pv15, (p2_bload, [6, 7], True))]
    poll_check(S, gchk, "f1", sFl, 0, vP, ("f1",)); spin_code("f1", sFl, 0, vP)
    nxt = PRE; gs = sorted(bar_gap)
    cuts = sorted(set([b for b in bar_gap.values()] + [gchk + 2, it_span[15][0] - 1, pv15 - 1] + list(range(15, 300, 16))))
    cuts = [c_ for k_, c_ in enumerate(cuts) if c_ in bar_gap.values() or c_ > 300 or not any(abs(c_ - b) < 6 for b in bar_gap.values())]
    for idx, b0 in enumerate(cuts):
        ops = []
        g1 = cuts[idx + 1] if idx + 1 < len(cuts) else NM - 2
        lastbar = max(b for b in bar_gap.values() if b <= b0); g = max(k for k in gs if bar_gap[k] == lastbar)
        while late and late[0][0] - opt.lead < g1:
            if bar_gap[gof(nxt)] <= late[0][0] and (prev_occ(nxt) is None or last_use_gap[prev_occ(nxt)] < lastbar):
                ops += dma(nxt); nxt += 1; continue
            u = late.pop(0)[1]; ops += u[0](*u[1:])
        while not late and nxt < NCH and (prev_occ(nxt) is None or last_use_gap[prev_occ(nxt)] < lastbar):
            ops += dma(nxt) if not opt.nodma else []; nxt += 1
        while timed and timed[0][0] < g1:
            u = timed.pop(0)[1]; ops += u[0](*u[1:])
        if ops: S.spread(ops, b0 + 1, max(g1 - 1, b0 + 2))
    assert nxt == NCH and not late and not timed, (nxt, late, timed)
    pk = [60, 8, 12, 4]
    S.spread([(f"ds_read_b128 {v(pk[k],4)}, v{vPark} offset:{16*(3,1,2,0)[k]}", ("park",)) for k in range(4)], it_span[1][0] + 1, it_span[1][0] + 24)
    S.at(it_span[2][0], lambda P_: P_.wait(lg=[("park",)]))

    def ffn_epi(cn):
        ch = chains[cn]; ops = []; T = vTmp
        hs = sHs if ch["col"][0] == "sh" else sH; off = 0 if ch["col"][0] == "sh" else 1024 * ch["col"][1]
        for n_, tb in enumerate(ch["tbs"]):
            stg = T + 16 + 4 * (n_ & 1)
            vals = [(acc(ch["base"], b, tb) + r, acc(ch["base"], 2 + b, tb) + r) for b in range(2) for r in range(4)]
            for step in range(8 + 5):
                if step < 8: ops.append(f"v_mul_f32 v{T+step}, s{sC_nl2e}, v{vals[step][0]}")
                e = step - 1
                if 0 <= e < 8: ops.append(f"v_exp_f32 v{T+e}, v{T+e}")
                e = step - 3
                if 0 <= e < 8: ops.append(f"v_rcp_f32 v{T+e}, v{T+e}")
                e = step - 2
                if 0 <= e < 8: ops.append(f"v_add_f32 v{T+e}, 1.0, v{T+e}"); ops.append(f"v_mul_f32 v{T+8+e}, v{vals[e][0]}, v{vals[e][1]}")
                e = step - 5
                if 0 <= e < 8:
                    ops.append(f"v_mul_f32 v{T+8+e}, v{T+8+e}, v{T+e}")
                    if e & 1: ops.append(f"v_cvt_pk_bf16_f32 v{stg+(e>>1)}, v{T+8+e-1}, v{T+8+e}")
            ops.append((f"buffer_store_dwordx4 {v(stg,4)}, v{vLane16}, s[{sWS}:{sWS+3}], s{hs[n_]} offen offset:{off}{SC}", ("h", cn)))
        return ops
    def q_epi(ch):
        ops = []
        for s2 in range(2):
            for tb in range(4):
                A0 = acc(ch["base"], 2 * s2, tb); A1 = acc(ch["base"], 2 * s2 + 1, tb)
                for r in range(4): ops.append(f"v_mul_f32 v{A0+r}, s{sC_qs}, v{A0+r}")
                for r in range(4): ops.append(f"v_mul_f32 v{A1+r}, s{sC_qs}, v{A1+r}")
                ops += [f"v_cvt_pk_bf16_f32 v{A0}, v{A0}, v{A0+1}", f"v_cvt_pk_bf16_f32 v{A0+1}, v{A0+2}, v{A0+3}",
                        f"v_cvt_pk_bf16_f32 v{A0+2}, v{A1}, v{A1+1}", f"v_cvt_pk_bf16_f32 v{A0+3}, v{A1+2}, v{A1+3}"]
        return ops
    for cn in range(1, 7):
        if not opt.noepi or cn == 6: S.spread(ffn_epi(cn - 1) if cn < 6 else q_epi(chains[5]), span[cn][0] + 6, span[cn][1] - 4)
    gp = min(g for g in gs if bar_gap[g] > span[6][0] + 100)
    extra_wait[gp] = [("h", cn) for cn in range(5)] if not opt.noepi else []
    S.spread([f"buffer_store_dword v{vOne}, off, s[{sWS}:{sWS+3}], s{sFlo} sc1"], bar_gap[gp] + 1, bar_gap[gp] + 12)
    q2 = q_epi(chains[6])
    S.at(att0 - 1, lambda P_: (P_("s_nop 7"), [P_(x) for x in q2], P_("s_nop 1")), c=3)

    def xreduce4(op, r, t):
        o = []
        for sw in ("v_permlane16_swap_b32", "v_permlane32_swap_b32"):
            o += [f"v_mov_b32 v{t+k}, v{r+k}" for k in range(4)] + [f"{sw} v{r+k}, v{t+k}" for k in range(4)] + [f"{op} v{r+k}, v{r+k}, v{t+k}" for k in range(4)]
        return o
    def max8(p, tb, d):
        a = Sr(p, 0, tb); b = Sr(p, 1, tb)
        return [f"v_max3_f32 v{d}, v{a}, v{a+1}, v{a+2}", f"v_max3_f32 v{d}, v{d}, v{a+3}, v{b}", f"v_max3_f32 v{d}, v{d}, v{b+1}, v{b+2}", f"v_max_f32 v{d}, v{d}, v{b+3}"]
    def sm_parts(i, ladd=True):
        p = i & 1; E = lambda k: ER[k % len(ER)]
        exps = []; plain = []
        for k in range(32):
            tb, e = k >> 3, k & 7
            exps.append(f"v_exp_f32 v{E(k)}, v{Sr(p, e >> 2, tb) + (e & 3)}")
            if e == 0:
                if ladd: plain.append((f"v_add_f32 v{vL+tb}, v{vL+tb}, v{vTS+tb}", -1, k - 1))
            elif e == 1: plain.append((f"v_add_f32 v{vTS+tb}, v{E(k-1)}, v{E(k)}", k, k - 2))
            else: plain.append((f"v_add_f32 v{vTS+tb}, v{vTS+tb}, v{E(k)}", k, k - 1 - (k & 1)))
            if e & 1: plain.append((f"v_cvt_pk_bf16_f32 v{Pr(p, tb)+(e>>1)}, v{E(k-1)}, v{E(k)}", k, k))
        return exps, plain
    def softmax(i, ladd=True):
        exps, plain = sm_parts(i, ladd); ops = []; j = 0
        for k in range(34):
            if k < 32: ops.append(exps[k])
            while j < len(plain) and plain[j][1] <= k - 2: ops.append(plain[j][0]); j += 1
        return ops
    def check_ops():
        t = vTmp + 8
        return [f"v_max3_f32 v{t}, v{vTS}, v{vTS+1}, v{vTS+2}", f"v_max_f32 v{t}, v{t}, v{vTS+3}", f"v_cmp_nle_f32 vcc, v{t}, v{vThr}"]
    def pack_softmax(i, a0, a1):
        exps, plain = sm_parts(i)
        plain = plain + [(x, 31, 31) for x in check_ops()]
        for extra in range(0, 200):
            n = a1 - a0; cap = [2] * n
            for q in range(extra): cap[((q * n) // extra + n // (2 * extra)) % n if extra <= n else q % n] += 1
            place = []; ke = 0; kp = 0; egap = {}; rel = -1
            for g in range(a0, a1):
                free = cap[g - a0] - S.used(g)
                while free > 0:
                    pready = kp < len(plain) and (plain[kp][1] < 0 or (plain[kp][1] in egap and egap[plain[kp][1]] <= g - 2))
                    eok = ke < 32 and free >= 2 and (ke < len(ER) or rel >= ke - len(ER))
                    if eok and not (pready and free == 3 and False):
                        place.append((g, exps[ke])); egap[ke] = g; ke += 1; free -= 2
                    elif pready:
                        place.append((g, plain[kp][0])); rel = max(rel, plain[kp][2]); kp += 1; free -= 1
                    else: break
            if ke == 32 and kp == len(plain):
                for g, x in place: S.at(g, x)
                return extra
        assert False
    init = [f"v_mov_b32 v{vThr}, {hex(f2u(opt.thr))}"]
    for tb in range(4): init += max8(0, tb, vTS + tb)
    init += xreduce4("v_max_f32", vTS, vTmp + 10)
    for tb in range(4):
        for r in range(4): init.append(f"v_sub_f32 v{NEGM+4*tb+r}, 0, v{vTS+tb}")
        init.append(f"v_mov_b32 v{vL+tb}, 0")
        for kb in range(2):
            for r in range(4): init.append(f"v_sub_f32 v{Sr(0,kb,tb)+r}, v{Sr(0,kb,tb)+r}, v{vTS+tb}")
    a0, a1 = it_span[0]
    S.at(att0 + 2, "v_lshlrev_b32 v54, 7, v0")
    S.spread(init, a0 + 5, a1)
    fix1 = [f"v_add_f32 v{Sr(1,kb,tb)+r}, v{Sr(1,kb,tb)+r}, v{NEGM+4*tb}" for kb in range(2) for tb in range(4) for r in range(4)]
    sm0 = softmax(0, ladd=False)
    S.at(a1 - 1, lambda P_: ([P_(x) for x in sm0], [P_(x) for x in fix1], P_("s_nop 1")), c=3)
    extras = []
    for i in range(1, 16):
        a0, a1 = it_span[i]
        extras.append(pack_softmax(i, a0, a1 - 1))
        S.at(a1 - 1, f"s_cbranch_vccnz L_rare{i}", c=3); S.at(a1 - 1, f"L_back{i}:", c=3)
    fin = [f"v_add_f32 v{vL+tb}, v{vL+tb}, v{vTS+tb}" for tb in range(4)] + xreduce4("v_add_f32", vL, vTmp + 10) + [f"v_rcp_f32 v{vL+tb}, v{vL+tb}" for tb in range(4)]
    S.spread(fin, pv15 + 1, att1 - 2)
    XO = SETA
    def o_epilogue(P_):
        st.mark(P_)
        k = 0
        for s_ in range(4):
            for tb in range(4):
                T = XNV + 8 * (k & 3); D = XO + 16 * s_ + 4 * tb
                for u in range(2):
                    for r in range(4): P_(f"v_accvgpr_read_b32 v{T+4*u+r}, a{Or(2*s_+u, tb)+r}")
                lp = vL + (tb & ~1); sel = "op_sel_hi:[1,0]" if tb % 2 == 0 else "op_sel:[0,1] op_sel_hi:[1,1]"
                for e in range(4): P_(f"v_pk_mul_f32 {v(T+2*e,2)}, {v(T+2*e,2)}, {v(lp,2)} {sel}")
                for e in range(4): P_(f"v_cvt_pk_bf16_f32 v{D+e}, v{T+2*e}, v{T+2*e+1}")
                P_(f"buffer_store_dwordx4 {v(D,4)}, v{vLane16}, s[{sWS}:{sWS+3}], s{sO[tb]} offen offset:{1024*s_}{SC}", ("o",))
                k += 1
    S.at(att1 - 1, o_epilogue, c=3)

    acc2 = lambda b, tb: 16 * b + 4 * tb
    def rd_addr(g, ks4, t, b):
        A = p2slot(g) + ks4 * 9216 + 16 * t * 288 + 32 * b - 16384
        return vRb[A >> 16], A & 0xffff
    ph0 = fragc[0] & 7
    def p2_windows(S2, order, ph, shifts=(), own=False):
        out = []
        for k, (g, hp, b) in enumerate(order):
            if k in shifts: ph += 2
            fr = [AR + 4 * ((ph + s_) & 7) for s_ in range(2)]; ph += 2
            reads = []
            for s_ in range(2):
                for t in range(2):
                    rb, off = rd_addr(g, 2 * hp + s_, t, b)
                    reads.append((f"ds_read_b64_tr_b16 {v(fr[s_]+2*t,2)}, v{rb} offset:{off}", ("r2", g, hp, b)))
            start = len(S2.M)
            for tb in range(4):
                for s_ in range(2):
                    c = 4 * g + 2 * hp + s_; A = a_(acc2(b, tb), 4)
                    vm = [("b", 4 * g + 2 * hp + s2, tb2) for s2 in range(2) for tb2 in range(4)] if (b == 0 and not own) else []
                    S2.mfma(f"{MF} {A}, {v(fr[s_],4)}, {v(XO + 16 * c + 4 * tb, 4) if own else bf(c, tb)}, {'0' if c == 0 else A}", vm, [("r2", g, hp, b)])
            out.append(dict(start=start, reads=reads, g=g, hp=hp, b=b))
        return out
    grp = lambda g: [(g, hp, b) for hp in range(2) for b in range(9)]
    final = [(g, hp, b) for b in range(9) for g in (7, 8) for hp in range(2)]
    def place_reads(S2, wl, first):
        seen_g = set(first)
        for k in range(2, len(wl)):
            W = wl[k]; g0 = wl[k - 2]["start"]
            if W["g"] not in seen_g:
                gg = [W["g"]] if W["g"] != 7 else [7, 8]
                seen_g.update(gg)
                S2.at(g0 - 1, (lambda gg: lambda P_: P_.wait(vm=[("w", x) for x in gg] + p2_extra.get(gg[0], [])))(gg)); S2.at(g0, "s_barrier")
                bar2[W["g"]] = g0
            for q, (t, tag) in enumerate(W["reads"]): S2.at(g0 + 2 * q, t, tag)
    p2_extra = {}; bar2 = {}
    SC_ = Sched2(); order_c = sum((grp(g) for g in range(2, 7)), []) + final
    wc = p2_windows(SC_, order_c, ph0)
    place_reads(SC_, wc, [2])
    gs2 = {g: (144 * (g - 2), 144 * (g - 1)) for g in range(2, 7)}; F0 = 144 * 5
    for g in range(2, 7):
        a0, a1 = gs2[g]; mid = a0 + 72
        if g == 6:
            SC_.spread(p2_dma(8) + p2_bload([32, 33, 34, 35]), a0, a0 + 100)
        else:
            SC_.spread(p2_bload([4 * g + 8, 4 * g + 9]) + p2_dma(g + 2), a0, mid - 2)
            SC_.spread(p2_bload([4 * g + 10, 4 * g + 11]), mid, a1 - 18)
    def pub_block(b):
        ops = []
        for tp in range(2):
            T = 32 + 12 * tp
            for u in range(2):
                for r in range(4): ops.append(f"v_accvgpr_read_b32 v{T+4*u+r}, a{acc2(b, 2*tp+u)+r}")
            for e in range(4): ops.append(f"v_cvt_pk_bf16_f32 v{T+8+e}, v{T+2*e}, v{T+2*e+1}")
            sp = (sPa, sPb)[tp]
            if b % 2 == 0 and b: ops.append(f"s_add_u32 s{sp}, s{sp}, 4096")
            ops.append((f"buffer_store_dwordx4 {v(T+8,4)}, v{vLane16}, s[{sWS}:{sWS+3}], s{sp} offen offset:{2048*(b&1)}{SC}", ("p",)))
        return ops
    for b in range(8): SC_.spread(pub_block(b), F0 + 32 * (b + 1) + 5, F0 + 32 * (b + 2))
    oflag = f"buffer_store_dword v{vOne}, off, s[{sWS}:{sWS+3}], s{sFlo} offset:128 sc1"
    def head(role):
        S2 = Sched2()
        order = grp(0) + (grp(1) if role == "g" else [])
        wl = p2_windows(S2, order, ph0, shifts=() if role == "g" else (6, 12), own=(role == "s"))
        n = len(S2.M)
        ext = wl + [dict(start=n, reads=wc[0]["reads"], g=2), dict(start=n + 8, reads=wc[1]["reads"], g=2)]
        place_reads(S2, ext, [0])
        gp_ = opt.gpub
        S2.at(gp_ - 1, lambda P_: P_.wait(vm=[("o",)])); S2.at(gp_, "s_barrier")
        if opt.stamps and opt.sset == "2":
            for k_, g_ in enumerate((gp_ - 2, gp_, 142)): S2.at(g_, (lambda k_: lambda P_: st.mark(P_, idx=4 + k_))(k_), c=3)
        if role == "g":
            S2.spread(p2_dma(2) + p2_bload([8, 9]), opt.ghold, gp_ - 1)
            S2.spread([oflag] + p2_bload([10, 11]), gp_ + 1, 144)
            S2.spread(p2_bload([12, 13]) + p2_dma(3), 144, 214); S2.spread(p2_bload([14, 15]), 216, 270)
        else:
            S2.at(wl[16]["start"] - 1, lambda P_: P_.wait(lg=[("r2", 0, 1, 8)]), c=3)
            S2.at(0, f"s_sub_u32 s{sRot}, s{sRot}, 1")
            S2.spread(p2_dma(2) + p2_dma(3), opt.ghold, gp_ - 1)
            S2.spread([oflag], gp_ + 1, gp_ + 8)
            def tail(P_):
                P_("s_branch L_spin_fo"); P_("L_ok_fo:"); P_("s_waitcnt vmcnt(0)")
                for x in p2_bload(list(range(8, 16))): P_(*x)
            S2.at(n - 1, tail, c=3)
        return S2, wl
    spin_code("fo", sFl, 128, vP)
    Sg, wlg = head("g"); Ss, wls = head("s")
    gY = wins[-1]["start"]
    S.at(gY - 1, lambda P_: P_.wait(vm=[("w", 0)])); S.at(gY, "s_barrier")
    for k in range(2):
        for q, (t, tag) in enumerate(wlg[k]["reads"]): S.at(wins[-1]["start"] + 8 * k + 2 * q + 1, t, tag)
    if opt.stamps:
        for g_ in (span[1][0], span[2][0], span[5][0], att0, it_span[1][0]): S.at(g_, lambda P_: st.mark(P_, sets="1"), c=3)
    P.wait(vm=[("c", c) for c in range(G)]); P("s_barrier")
    for W in head_reads:
        for (t, tag) in W["reads"]: P(t, tag)
    S.emit(P)
    st.mark(P)
    P("s_barrier"); P(f"s_cmp_eq_u32 s{sRole}, 0"); P("s_cbranch_scc1 L_p2_s")
    pre_len = len(P.L); vm0, lg0 = list(P.vm), list(P.lg)
    Sg.emit(P); P("s_branch L_p2_join")
    vmG, lgG = list(P.vm), list(P.lg)
    P.vm, P.lg = list(vm0), list(lg0)
    mid_len = len(P.L)
    P("L_p2_s:"); Ss.emit(P); P("L_p2_join:")
    if len(lgG) > len(P.lg): P.lg = lgG
    assert lgG[-8:] == P.lg[-8:] or opt.stamps, (lgG, P.lg)
    P.alt = [vmG]
    join_len = len(P.L)
    if opt.sset == "2": st.n = 7
    st.mark(P)
    for g_ in (144, 288, 720): SC_.at(g_ - 1, lambda P_: st.mark(P_, sets="2"), c=3)
    SC_.emit(P)
    st.mark(P)
    P("s_nop 7")
    for x in pub_block(8): P(*((x,) if isinstance(x, str) else x))
    sX, sOut = sWG, sWU
    srd(P, sX, sXp, sXp + 1, 2359296); srd(P, sOut, sOp, sOp + 1, 2359296)
    vXo = 112
    P(f"v_lshrrev_b32 v114, 4, v{vLane16}"); P("v_and_b32 v115, 15, v114"); P("s_movk_i32 s100, 1152"); P("v_mul_lo_u32 v115, v115, s100"); P("v_lshrrev_b32 v114, 4, v114")
    P(f"v_lshl_add_u32 v{vXo}, v114, 3, v115"); P(f"v_add_u32 v{vXo+1}, {16*1152}, v{vXo}")
    P(f"v_and_b32 v{vPoll}, 12, v{vPoll}")
    sU = [38, 39, 40]; sXo = [41, 42, 43]
    P("s_mul_i32 s44, s7, 9"); P(f"s_lshl_b32 s45, s{sTile}, 3"); P(f"s_mul_i32 s45, s45, {72*1024}"); P(f"s_add_u32 s45, s45, {PART_OFF}")
    P(f"s_and_b32 s46, s{sTile}, 3"); P("s_mul_i32 s46, s46, 288"); P("s_lshl_b32 s47, s4, 8")
    for q in range(3):
        if q < 2:
            P(f"s_add_u32 s52, s44, s3")
            if q: P(f"s_add_u32 s52, s52, 4")
        else: P("s_add_u32 s52, s44, 8")
        P(f"s_lshl_b32 s53, s52, 10"); P(f"s_add_u32 s{sU[q]}, s53, s45")
        P(f"s_mul_hi_u32 s53, s52, {(2**32 + 17) // 18}"); P("s_mul_i32 s54, s53, 18"); P("s_sub_u32 s54, s52, s54")
        P("s_lshl_b32 s53, s53, 6"); P("s_and_b32 s55, s54, 1"); P("s_lshl_b32 s55, s55, 5"); P("s_add_u32 s53, s53, s55"); P("s_add_u32 s53, s53, s47"); P("s_mul_i32 s53, s53, 1152")
        P("s_lshr_b32 s54, s54, 1"); P("s_lshl_b32 s54, s54, 5"); P("s_add_u32 s53, s53, s54"); P(f"s_add_u32 s{sXo[q]}, s53, s46")
    P("s_cmp_eq_u32 s3, 0"); P(f"s_cselect_b32 s{sU[2]}, s{sU[2]}, 0x10000000"); P(f"s_cselect_b32 s{sXo[2]}, s{sXo[2]}, 0x10000000")
    XR = 116
    for q in range(3):
        for u in range(2): P(f"buffer_load_dwordx2 {v(XR+4*q+2*u,2)}, v{vXo+u}, s[{sX}:{sX+3}], s{sXo[q]} offen", ("xx",))
    P.wait(vm=[("p",)]); P("s_barrier")
    P(f"buffer_store_dword v{vOne}, off, s[{sWS}:{sWS+3}], s{sPFo} sc1")
    st.mark(P)
    PR = 128
    def unit_loads(h):
        for kk in range(4 * h, 4 * h + 4):
            for q in range(3):
                P(f"buffer_load_dwordx4 {v(PR+32*q+4*kk,4)}, v{vLane16}, s[{sWS}:{sWS+3}], s{sU[q]} offen{SC}", ("pp", q, h))
                P(f"s_add_u32 s{sU[q]}, s{sU[q]}, {72*1024}")
    def usum(q, h):
        D = 64 + 16 * q + 8 * h
        for kk in range(4 * h, 4 * h + 4):
            for j in range(4):
                src = PR + 32 * q + 4 * kk + j; d = D if kk & 3 == 0 else 32
                P(f"v_lshlrev_b32 v{d+2*j}, 16, v{src}"); P(f"v_and_b32 v{d+2*j+1}, 0xffff0000, v{src}")
            if kk & 3:
                for j in range(4): P(f"v_pk_add_f32 {v(D+2*j,2)}, {v(D+2*j,2)}, {v(32+2*j,2)}")
    P("s_branch L_spin_ps"); P("L_ok_ps:"); spin_code("ps", sPF, 0, 0)
    P("s_waitcnt vmcnt(0)")
    unit_loads(0)
    P("s_branch L_spin_pg"); P("L_ok_pg:"); spin_code("pg", sPF, 128, 0)
    P("s_waitcnt vmcnt(0)")
    st.mark(P)
    unit_loads(1)
    for q in range(3): usum(q, 0)
    for q in range(3):
        if q == 2: P("s_cmp_eq_u32 s3, 0"); P("s_cbranch_scc0 L_fin")
        P.wait(vm=[("pp", q, 1)]); usum(q, 1)
        Sg_ = 64 + 16 * q
        for e in range(8): P(f"v_mul_f32 v{32+e}, s{sC_nl2e}, v{Sg_+8+e}")
        for e in range(8): P(f"v_exp_f32 v{32+e}, v{32+e}")
        for e in range(8): P(f"v_add_f32 v{32+e}, 1.0, v{32+e}")
        for e in range(8): P(f"v_rcp_f32 v{32+e}, v{32+e}")
        for e in range(8): P(f"v_mul_f32 v{Sg_+e}, v{Sg_+e}, v{Sg_+8+e}")
        for j in range(4):
            P(f"v_lshlrev_b32 v{40+2*j}, 16, v{XR+4*q+j}"); P(f"v_and_b32 v{41+2*j}, 0xffff0000, v{XR+4*q+j}")
        for e in range(8): P(f"v_fmac_f32 v{40+e}, v{Sg_+e}, v{32+e}")
        O = 48 + 4 * q
        for j in range(4): P(f"v_cvt_pk_bf16_f32 v{O+j}, v{40+2*j}, v{41+2*j}")
        for u in range(2): P(f"buffer_store_dwordx2 {v(O+2*u,2)}, v{vXo+u}, s[{sOut}:{sOut+3}], s{sXo[q]} offen")
    P("L_fin:")
    if opt.stamps:
        P("s_waitcnt vmcnt(0)"); st.mark(P); st.mark(P, True); st.flush(P, sWS, 16)
    P("L_main_end:"); P("s_endpgm")
    Q = Prog()
    for sp in spins: Q(sp)
    for i in range(1, 16):
        Q(f"L_rare{i}:"); Q(f"s_mov_b32 s{sRet}, {i}"); Q(f"s_branch L_rarebody{i&1}")
    for p in range(2):
        Q(f"L_rarebody{p}:"); Q("s_nop 15")
        d = vTmp; f = vTmp + 4; t = vTmp + 8
        for tb in range(4):
            for x in max8(p, tb, d + tb): Q(x)
        for x in xreduce4("v_max_f32", d, vTmp + 10): Q(x)
        for tb in range(4): Q(f"v_max_f32 v{d+tb}, 0, v{d+tb}")
        for tb in range(4): Q(f"v_sub_f32 v{f+tb}, 0, v{d+tb}")
        for tb in range(4): Q(f"v_exp_f32 v{f+tb}, v{f+tb}")
        for tb in range(4):
            for r in range(4): Q(f"v_sub_f32 v{NEGM+4*tb+r}, v{NEGM+4*tb+r}, v{d+tb}")
            for pp in range(2):
                for kb in range(2):
                    for r in range(4): Q(f"v_sub_f32 v{Sr(pp,kb,tb)+r}, v{Sr(pp,kb,tb)+r}, v{d+tb}")
            Q(f"v_mul_f32 v{vL+tb}, v{vL+tb}, v{f+tb}")
            for db in range(8):
                for r in range(4):
                    Q(f"v_accvgpr_read_b32 v{t}, a{Or(db,tb)+r}"); Q(f"v_mul_f32 v{t}, v{t}, v{f+tb}"); Q(f"v_accvgpr_write_b32 a{Or(db,tb)+r}, v{t}")
        for x in softmax(p, ladd=False): Q(x)
        Q("s_nop 3")
        for i in range(1, 16):
            if (i & 1) == p: Q(f"s_cmp_eq_u32 s{sRet}, {i}"); Q(f"s_cbranch_scc1 L_back{i}")
        Q("s_endpgm")
    lin_g = P.L[:mid_len] + P.L[join_len:]
    lin_s = P.L[:pre_len] + P.L[mid_len:]
    info = f"est: gemm {S.est(0, att0)} att {S.est(att0, att1)} (extras {extras})  p2 g-head {Sg.est()} s-head {Ss.est()} common {SC_.est()}"
    return P, Q, lin_g, lin_s, info, st.n
def build():
    m, mq, lin_g, lin_s, info, nst = gen_main()
    code_bytes = 96 * 1024
    k0, k0q = gen_k0(code_bytes)
    probs = check(k0.L, "k0") + check(k0q.L, "k0q") + check(lin_g, "main/g") + check(lin_s, "main/s") + check(mq.L, "rare")
    for p in probs[:40]: print("PROBLEM", p, file=sys.stderr)
    out = "; LayerNorm -> (GQA cached attention, SwiGLU FFN) -> x + s * silu(g);  emitted by a hand-written scheduling script\n"
    out += "; @launch kernel=ln_kernel grid=(256,1,1) block=(256,1,1) lds=0\n"
    out += "; @launch kernel=main_kernel grid=(256,1,1) block=(256,1,1) lds=163840\n"
    out += '.amdgcn_target "amdgcn-amd-amdhsa--gfx950"\n.text\n'
    out += khead("ln_kernel") + k0.text() + k0q.text() + khead("main_kernel") + m.text() + mq.text() + "L_code_end:\n.fill 64, 4, 0xBF800000\ns_endpgm\n"
    out += kdesc("ln_kernel", 128, 128) + kdesc("main_kernel", 512, 256)
    print(info, "maxvm", m.maxvm, "maxlg", m.maxlg, "throttle", getattr(m, "throttle", 0), "autonop", getattr(m, "autonop", 0), f"ins {len(m.L)} stamps {nst} problems {len(probs)}", file=sys.stderr)
    return out

if __name__ == "__main__":
    outp = sys.argv[1]
    for a in sys.argv[2:]:
        k, val = a.split("=")
        cur = getattr(opt, k)
        setattr(opt, k, type(cur)(val) if not isinstance(cur, bool) else val in ("1", "True"))
    open(outp, "w").write(build())
```

```python
import sys, math, struct
from asmlib import *

import os
_SH = int(os.environ.get("WSSHIFT", "0")) << 20
XN_OFF = 0
FLAG_OFF = 3 << 20
ACT_OFF = (4 << 20) + _SH
PART_OFF = (44 << 20) + _SH
WS_USED = (64 << 20) + _SH
STAMP_OFF = 0xF000000
def f2u(x): return struct.unpack("<I", struct.pack("<f", x))[0]
LOG2E = 1.4426950408889634
MF = "v_mfma_f32_16x16x32_bf16"

class Opt:
    group = 4
    stamps = False
    thr = 1024.0
    gpub = 168
    gpoll = 80
    prefetch = True
    sc = " sc1"
    noepi = False
    nodma = False
    nobar = False
    nostore = False
    pro_gap = 40
    lead = 96
    scl = ' sc1'
    nob = False
    now = False
    map1 = '4x8'
    sset = '1'
    wpre = True
    ghold = 1
    nost = 4
    skew = 3
    hcut = 44
    pro_n = 16
    pace = 5.0
    fine = 0
    dpace = 20.0
    npre = 16
    batch = 4
    bwait = 2
    ne = 6
    pa_early = 0
opt = Opt()

def srd(P, d, lo, hi, nbytes):
    P(f"s_mov_b32 s{d}, s{lo}"); P(f"s_and_b32 s{d+1}, s{hi}, 0xffff"); P(f"s_mov_b32 s{d+2}, {nbytes}"); P(f"s_mov_b32 s{d+3}, 0x20000")
def kdesc(k, vgpr, accum, sgpr=102):
    return f""".section .rodata,"a"
.p2align 6
.amdhsa_kernel {k}
  .amdhsa_next_free_vgpr {vgpr}
  .amdhsa_next_free_sgpr {sgpr}
  .amdhsa_accum_offset {accum}
  .amdhsa_group_segment_fixed_size 0
  .amdhsa_kernarg_size 96
  .amdhsa_user_sgpr_count 2
  .amdhsa_user_sgpr_kernarg_segment_ptr 1
  .amdhsa_system_sgpr_workgroup_id_x 1
  .amdhsa_float_denorm_mode_32 3
.end_amdhsa_kernel
.text
"""
def khead(k): return f".globl {k}\n.p2align 8\n.type {k},@function\n{k}:\n"

STR = list(range(84, 96)) + [0, 1, 6, 5]
class Stamps:
    def __init__(self, kidx): self.n = 0; self.kidx = kidx
    def mark(self, P, real=False, idx=None, sets="12345"):
        if not opt.stamps or opt.sset not in sets: return
        if idx is None: idx = self.n; self.n += 1
        P(f"{'s_memrealtime' if real else 's_memtime'} s[100:101]"); P("s_waitcnt lgkmcnt(0)"); P(f"s_mov_b32 s{STR[idx]}, s100" if opt.sset != "5" else f"v_mov_b32 v{230+idx}, s100")
        assert idx < 16
    def flush(self, P, wsrd, vt):
        if not opt.stamps: return
        P(f"s_mov_b32 s{wsrd+2}, 0x10000000"); P(f"s_lshl_b32 s100, s2, 6"); P(f"s_add_u32 s100, s100, {STAMP_OFF + self.kidx * 65536}")
        P(f"s_cmp_lg_u32 s3, {0 if opt.sset == '5' else 3}"); P("s_cbranch_scc1 L_main_end" if opt.sset != "5" else "s_cbranch_scc1 L_flush5")
        for i in range(self.n):
            P(f"v_mov_b32 v{vt}, s{STR[i]}" if opt.sset != "5" else f"v_mov_b32 v{vt}, v{230+i}"); P(f"buffer_store_dword v{vt}, off, s[{wsrd}:{wsrd+3}], s100 offset:{4*i}"); P("s_waitcnt vmcnt(0)")

def decode_ids(P):
    P("s_and_b32 s6, s2, 7"); P("s_lshr_b32 s7, s2, 3")
    if opt.map1 == "8x4":
        P("s_and_b32 s4, s7, 7"); P("s_and_b32 s5, s6, 3"); P("s_lshl_b32 s5, s5, 3"); P("s_lshr_b32 s72, s6, 2"); P("s_lshl_b32 s72, s72, 2"); P("s_add_u32 s5, s5, s72")
        P("s_lshr_b32 s72, s7, 3"); P("s_add_u32 s5, s5, s72")
        return
    P("s_and_b32 s4, s6, 1"); P("s_lshl_b32 s4, s4, 2"); P("s_and_b32 s72, s7, 3"); P("s_add_u32 s4, s4, s72")
    P("s_lshr_b32 s5, s6, 1"); P("s_lshl_b32 s5, s5, 3"); P("s_lshr_b32 s72, s7, 2"); P("s_add_u32 s5, s5, s72")

KNAME = "recurrent_scan__sliding_block_cached__swiglu_ffn__prompt_kernel"
def gen_main():
    P = Prog(); st = Stamps(1); P.optional = {("c", 95)}
    G = opt.group; NSLOT = 16; AHEAD = NSLOT // G - 2
    GST = list(range(0, opt.fine, 2)) + list(range(opt.fine, 80, G)) + list(range(80, 96, 2))
    gof = lambda c: max(k for k, s_ in enumerate(GST) if s_ <= c)
    gch = lambda g: [c for c in range(95) if gof(c) == g]
    SC = opt.sc
    REMAP = {87: 0, 89: 1, 91: 2, 93: 0}
    def slot_addr(c): return (c & 1) * 65536 + (REMAP[c] if c in REMAP else (c >> 1) & 7) * 8192
    def prev_occ(c):
        for p in range(c - 1, -1, -1):
            if slot_addr(p) == slot_addr(c): return p
        return None
    sWS, sWG, sWU, sWQ, sK, sV, sW2 = 8, 12, 16, 20, 24, 28, 32
    sW1k, sW2k = 36, 37
    sXN = [38, 39, 40, 41]; sH = [42, 43, 44, 45]; sHs = [46, 47]; sO = [48, 49, 50, 51]
    sFcol, sFsh, sQb, sKVb = 52, 53, 54, 55
    sFd, sFx, sAo, sXo_ = 96, 97, 98, 99
    sT = [56, 57, 58, 59]; sRet = 60; sC_nl2e, sC_qs, sSpin = 61, 62, 63
    sXp, sOp = 64, 66
    sBb, sRot, sWb, sLw, sRole, sFl, sFlo, sPF, sPFo, sPa, sPb, sGw, sTile, sMask, sEarly, sGb = range(68, 84)
    vOne, vLane16, vPoll, vF = 1, 2, 3, 4
    vQ0, vQ1, vPark = 5, 6, 7
    vFb = [[8, 9], [10, 11]]; vQb = [[12, 13], [14, 15]]
    vK0, vK1, vV0, vV1 = 16, 17, 18, 19
    vKb = [20, 21, 22, 23]; vVb = list(range(24, 32))
    vW = list(range(4, 13)); vRb = [13, 14, 15]; vB = [60, 61, 62, 63]
    vDb = [list(range(16, 20)), list(range(20, 24))]; vD = 24
    vL, vTS = 32, 36
    vTmp = 40; AR = 64; SETA, SETB = 96, 160; XNV = 224
    PARK = 131072
    def xn1(tb, ks):
        i = ks * 4 + tb
        return a_(4 * i, 4) if i < 64 else v(XNV + 4 * (i - 64), 4)
    acc = lambda base, b, tb: base + 16 * b + 4 * tb
    L_ = 40

    P("s_cmp_ge_u32 s2, 256"); P("s_cbranch_scc1 L_main_end")
    st.mark(P, True); st.mark(P)
    P("s_load_dwordx2 s[98:99], s[0:1], 88")
    P("s_load_dwordx4 s[92:95], s[0:1], 24")
    P("s_load_dwordx4 s[88:91], s[0:1], 8")
    P("s_load_dwordx4 s[76:79], s[0:1], 48")
    P("s_load_dwordx2 s[96:97], s[0:1], 64")
    P(f"s_load_dwordx2 s[{sXp}:{sXp+1}], s[0:1], 0"); P(f"s_load_dwordx2 s[{sOp}:{sOp+1}], s[0:1], 72")
    if opt.prefetch:
        P("s_getpc_b64 s[58:59]"); P("L_pc:"); P(f"s_sub_u32 s58, s58, L_pc-{KNAME}"); P("s_subb_u32 s59, s59, 0")
        P("s_lshr_b32 s100, s2, 3"); P("s_mul_i32 s100, s100, 28"); P("v_min_u32 v216, 123, v0"); P("v_add_u32 v217, s100, v216"); P("v_cmp_gt_u32 vcc, 96, v216")
        P(f"s_mov_b32 s100, (L_code_end-{KNAME})/128"); P("s_nop 0"); P("v_cndmask_b32 v216, v217, v216, vcc"); P("v_min_u32 v216, s100, v216"); P("v_lshlrev_b32 v216, 7, v216")
        P("global_load_dword v217, v216, s[58:59]")
    P("v_lshrrev_b32 v1, 6, v0"); P(f"v_and_b32 v{L_}, 63, v0"); P("s_nop 0"); P("v_readfirstlane_b32 s3, v1")
    decode_ids(P)
    P(f"s_lshl_b32 s{sW1k}, s3, 10"); P("s_and_b32 s6, s5, 1"); P("s_lshr_b32 s7, s5, 1")
    P(f"v_lshlrev_b32 v{vLane16}, 4, v{L_}")
    P("s_lshl_b32 s100, s3, 4")
    P("s_lshl_b32 s100, s3, 3")
    P(f"v_lshrrev_b32 v41, 3, v{L_}"); P("v_add_u32 v41, s100, v41"); P("s_movk_i32 s101, 9216"); P("v_mul_lo_u32 v42, v41, s101")
    P("v_bfe_u32 v43, v41, 1, 1"); P("v_bfe_u32 v44, v41, 3, 1"); P("v_lshl_add_u32 v43, v44, 1, v43"); P(f"v_bfe_u32 v44, v{L_}, 1, 2"); P("v_xor_b32 v43, v43, v44")
    P("v_lshl_add_u32 v42, v43, 5, v42"); P(f"v_and_b32 v43, 1, v{L_}"); P(f"v_lshl_add_u32 v{vD}, v43, 4, v42")
    P("s_lshl_b32 s58, s4, 4"); P("s_lshl_b32 s59, s3, 2"); P("s_add_u32 s60, s58, s59"); P("s_lshl_b32 s63, s6, 1")
    for t in range(4):
        P(f"s_xor_b32 s100, s63, {t}"); P("s_add_u32 s100, s100, s60"); P(f"s_mul_i32 s{sXN[t]}, s100, 18432")
    P(f"s_mul_i32 s{sFsh}, s7, 576"); P(f"s_mul_i32 s100, s6, 320"); P(f"s_add_u32 s{sFcol}, s{sFsh}, s100"); P(f"s_add_u32 s{sFsh}, s{sFsh}, 256")
    P("s_xor_b32 s61, s6, s7"); P("s_and_b32 s61, s61, 1")
    P("s_waitcnt lgkmcnt(0)")
    st.mark(P, sets="5")
    srd(P, sWS, 98, 99, WS_USED)
    P(f"s_lshl_b32 s{sFl}, s4, 12"); P(f"s_add_u32 s{sFl}, s{sFl}, {FLAG_OFF}")
    P(f"buffer_load_dword v{vOne}, off, s[{sWS}:{sWS+3}], s{sFl} offset:3968 sc1", ("ep",))
    XR0, FR0, AC = 96, 132, 204
    P("s_cmp_lg_u32 s3, 0"); P("s_cbranch_scc1 L_nox")
    P(f"s_mov_b32 s{sW2}, s{sXp}"); P(f"s_and_b32 s{sW2+1}, s{sXp+1}, 0xffff"); P(f"s_mov_b32 s{sW2+2}, 2359296"); P(f"s_mov_b32 s{sW2+3}, 0x20000")
    P(f"v_and_b32 v218, 7, v0"); P("v_lshrrev_b32 v215, 3, v0"); P("s_movk_i32 s100, 1152"); P("v_mul_lo_u32 v219, v218, s100"); P("v_lshl_add_u32 v219, v215, 4, v219")
    P("s_lshl_b32 s100, s4, 5"); P("s_add_u32 s100, s100, s5"); P("s_mul_i32 s100, s100, 9216")
    for i_ in range(9): P(f"buffer_load_dwordx4 {v(XR0+4*i_,4)}, v219, s[{sW2}:{sW2+3}], s100 offen offset:{128*i_}", ("xr", i_))
    P("L_nox:")
    srd(P, sWG, 76, 77, 5308416); srd(P, sWU, 78, 79, 5308416)

    P("s_mov_b32 s76, s96"); P("s_mov_b32 s77, s97")
    P(f"s_lshl_b32 s{sAo}, s61, 10"); P(f"s_lshl_b32 s100, s61, 6"); P(f"s_add_u32 s{sFd}, s{sFcol}, s100")
    P(f"s_xor_b32 s61, s61, 1"); P(f"s_lshl_b32 s{sXo_}, s61, 11"); P("s_lshl_b32 s100, s61, 7"); P(f"s_add_u32 s{sFx}, s{sFcol}, s100")

    T4 = [0, 1, 2, 3]
    half_acc = lambda b, tb: SETA + 16 * (1 + 2 * (b >> 1)) + 8 * (b & 1) + 4 * tb
    setacc = lambda base: (lambda b, tb: base + 16 * b + 4 * tb)
    chains = {"DA": dict(kind="D", acc=setacc(SETA), tbs=T4, hs=sH, hadd=sAo, hoff=0, S=0), "DB": dict(kind="D", acc=setacc(SETB), tbs=T4, hs=sH, hadd=sAo, hoff=1024, S=1),
              "X": dict(kind="F", acc=setacc(SETA), tbs=T4, c0=18, scol=sFx, coff=0, hs=sH, hadd=sXo_, hoff=0),
              "Y": dict(kind="F", acc=setacc(SETB), tbs=T4, c0=27, scol=sFcol, coff=192, hs=sH, hadd=None, hoff=3072),
              "Q1": dict(kind="Q", acc=setacc(SETA), base=SETA, tbs=T4, c0=36), "Q2": dict(kind="Q", acc=setacc(SETB), base=SETB, tbs=T4, c0=45),
              "H": dict(kind="F", acc=half_acc, tbs=[0, 1], c0=54, scol=sFsh, coff=0, hs=sHs, hadd=None, hoff=0)}
    KV0 = 63; NCH = 95
    tcount = [0]
    def nt():
        t = sT[tcount[0] & 3]; tcount[0] += 1; return t
    def dma(c):
        L = slot_addr(c); t = nt()
        if c < 18:
            so = f"s_add_u32 s{t}, s{sFd}, {c*32*9216}"; mw, d2 = sW1k, 4096; r0 = r1 = vD; s0, s1 = sWG, sWU
        elif c < 36 or 54 <= c < KV0:
            ch = chains["X" if c < 27 else ("Y" if c < 36 else "H")]
            so = f"s_add_u32 s{t}, s{ch['scol']}, {(c % 9)*64*9216 + ch['coff']}"; mw, d2 = sW1k, 4096; r0 = r1 = vF; s0, s1 = sWG, sWU
        elif c < 54:
            so = f"s_add_u32 s{t}, s{sQb}, {(c % 9)*64*8192 + 128*((c - 36) // 9)}"; mw, d2 = sW2k, 1024; r0, r1 = vQ0, vQ1; s0 = s1 = sWQ
        else:
            i = (c - KV0) >> 1; isv = (c - KV0) & 1
            r0, r1, s0 = (vV0, vV1, sV) if isv else (vK0, vK1, sK); s1 = s0
            so = f"s_add_u32 s{t}, s{sKVb}, {i*8192}"; mw, d2 = sW2k, 1024
        return [(f"s_add_u32 m0, s{mw}, {L}", None), (so, None), (f"buffer_load_dwordx4 v{r0}, s[{s0}:{s0+3}], s{t} offen lds", ("c", c)),
                (f"s_add_u32 m0, s{mw}, {L+d2}", None), (f"buffer_load_dwordx4 v{r1}, s[{s1}:{s1+3}], s{t} offen lds", ("c", c))]
    def xnload(tb, ks):
        t = nt()
        return [(f"s_add_u32 s{t}, s{sXN[tb]}, {(ks>>2)*4096}", None),
                (f"buffer_load_dwordx4 {xn1(tb, ks)}, v{vLane16}, s[{sWS}:{sWS+3}], s{t} offen offset:{(ks&3)*1024}{opt.scl}", ("x", tb, ks))]
    PRE = AHEAD * G + G
    NJ = 9 - opt.skew
    needA = lambda j: 64 * j if j < NJ else 64 * NJ + 32 * (j - NJ)
    PRE = opt.npre
    for c in range(4):
        for x in dma(c): P(*x)
    srd(P, sWQ, 92, 93, 4718592)
    P("s_lshr_b32 s100, s5, 3"); P("s_lshl_b32 s100, s100, 7"); P("s_and_b32 s101, s5, 7"); P("s_lshl_b32 s101, s101, 2"); P("s_add_u32 s92, s100, s101"); P(f"s_add_u32 s92, s92, s{sFl}")
    P(f"s_mov_b32 s93, s{sFl}")
    P(f"v_bfe_u32 v220, v0, 3, 2"); P("v_lshlrev_b32 v220, 7, v220"); P(f"v_and_b32 v{vPoll}, 7, v0"); P(f"v_lshlrev_b32 v{vPoll}, 2, v{vPoll}"); P(f"v_add_u32 v220, v220, v{vPoll}")
    units = [(needA(j_), (xnload, tb, 2 * j_ + s_)) for j_ in range(9) for s_ in range(2) for tb in range(4)]
    late = []; pos = 0.0
    for need, u in units[opt.pro_n:]:
        late.append((min(pos, need - 24), u)); pos += opt.pace
    P("s_cmp_lg_u32 s3, 0"); P("s_cbranch_scc1 L_other")
    P("v_lshrrev_b32 v219, 2, v215"); P("v_lshlrev_b32 v219, 10, v219"); P("v_and_b32 v216, 3, v215"); P("v_lshl_add_u32 v219, v216, 8, v219"); P("v_lshl_add_u32 v219, v218, 4, v219")
    P("s_lshl_b32 s100, s4, 4"); P("s_lshr_b32 s101, s5, 1"); P("s_add_u32 s100, s100, s101"); P("s_mul_i32 s61, s100, 18432"); P("s_lshl_b32 s100, s6, 7"); P("s_add_u32 s61, s61, s100")
    X, F, A = XR0, FR0, AC
    BC = "op_sel_hi:[1,0]"
    def xlane(rs, t):
        P("s_nop 1")
        for r in rs: P(f"v_add_f32_dpp v{r}, v{r}, v{r} row_ror:8 row_mask:0xf bank_mask:0xf")
        for sw in ("v_permlane16_swap_b32", "v_permlane32_swap_b32"):
            for k, r in enumerate(rs): P(f"v_mov_b32 v{t+k}, v{r}")
            P("s_nop 1")
            for k, r in enumerate(rs): P(f"{sw} v{r}, v{t+k}")
            P("s_nop 1")
            for k, r in enumerate(rs): P(f"v_add_f32 v{r}, v{r}, v{t+k}")
    PV_ = A + 8
    for i_ in range(9):
        P.wait(vm=[("xr", i_)])
        if i_ in (0, 8): st.mark(P, sets="5")
        for j_ in range(4):
            P(f"v_lshlrev_b32 v{F+8*i_+2*j_}, 16, v{X+4*i_+j_}"); P(f"v_and_b32 v{F+8*i_+2*j_+1}, 0xffff0000, v{X+4*i_+j_}")
        if i_ == 0:
            P(f"v_add_f32 v{PV_}, v{F}, v{F+1}"); xlane([PV_], A); P(f"v_mul_f32 v{PV_}, -0.0625, v{PV_}".replace("-0.0625", hex(f2u(-0.0625))))
        for j_ in range(4): P(f"v_pk_add_f32 {v(F+8*i_+2*j_,2)}, {v(F+8*i_+2*j_,2)}, {v(PV_,2)} {BC}")
        for j_ in range(4):
            x_ = v(F+8*i_+2*j_,2); a0_ = v(A+2*(j_&1),2); a1_ = v(A+4+2*(j_&1),2)
            if i_ == 0 and j_ < 2: P(f"v_mov_b32 v{A+2*j_}, v{F+2*j_}"); P(f"v_mov_b32 v{A+2*j_+1}, v{F+2*j_+1}"); P(f"v_pk_mul_f32 {a1_}, {x_}, {x_}")
            else: P(f"v_pk_add_f32 {a0_}, {a0_}, {x_}"); P(f"v_pk_fma_f32 {a1_}, {x_}, {x_}, {a1_}")
    P(f"v_pk_add_f32 {v(A,2)}, {v(A,2)}, {v(A+2,2)}"); P(f"v_pk_add_f32 {v(A+4,2)}, {v(A+4,2)}, {v(A+6,2)}")
    P(f"v_add_f32 v{A}, v{A}, v{A+1}"); P(f"v_add_f32 v{A+1}, v{A+4}, v{A+5}")
    xlane([A, A + 1], A + 2)
    P(f"v_add_u32 v{vOne}, 1, v{vOne}")
    P(f"v_mul_f32 v{A+2}, {hex(f2u(1.0/576))}, v{A}"); P(f"v_mul_f32 v{A}, {hex(f2u(1.0/576))}, v{A+1}")
    P(f"v_fma_f32 v{A}, -v{A+2}, v{A+2}, v{A}"); P(f"v_max_f32 v{A}, 0, v{A}")
    P(f"v_sub_f32 v{A+4}, v{PV_}, v{A+2}")
    P(f"v_cvt_pk_bf16_f32 v{A}, v{A}, v{A+4}")
    P(f"v_and_b32 v{A+4}, 0xffff0000, v{A}"); P(f"v_lshlrev_b32 v{A}, 16, v{A}"); P(f"v_sub_f32 v{A+4}, v{A+4}, v{PV_}")
    P(f"v_add_f32 v{A}, {hex(f2u(1e-5))}, v{A}"); P(f"v_cvt_pk_bf16_f32 v{A}, v{A}, v{A}"); P(f"v_lshlrev_b32 v{A}, 16, v{A}")
    P(f"v_sqrt_f32 v{A}, v{A}"); P(f"v_cvt_pk_bf16_f32 v{A}, v{A}, v{A}"); P(f"v_lshlrev_b32 v{A}, 16, v{A}")
    P(f"v_rcp_f32 v{A+2}, v{A}"); P("s_nop 0")
    for i_ in range(9):
        for j_ in range(4): P(f"v_pk_add_f32 {v(F+8*i_+2*j_,2)}, {v(F+8*i_+2*j_,2)}, {v(A+4,2)} {BC}")
        for j_ in range(4): P(f"v_cvt_pk_bf16_f32 v{X+4*i_+j_}, v{F+8*i_+2*j_}, v{F+8*i_+2*j_+1}")
        for j_ in range(4):
            P(f"v_lshlrev_b32 v{F+8*i_+2*j_}, 16, v{X+4*i_+j_}"); P(f"v_and_b32 v{F+8*i_+2*j_+1}, 0xffff0000, v{X+4*i_+j_}")
        for j_ in range(4): P(f"v_pk_mul_f32 {v(F+8*i_+2*j_,2)}, {v(F+8*i_+2*j_,2)}, {v(A+2,2)} {BC}")
        for j_ in range(4): P(f"v_cvt_pk_bf16_f32 v{X+4*i_+j_}, v{F+8*i_+2*j_}, v{F+8*i_+2*j_+1}")
        if i_ % 2 == 0 and i_ > 0: P("s_add_u32 s61, s61, 4096")
        P(f"buffer_store_dwordx4 {v(X+4*i_,4)}, v219, s[{sWS}:{sWS+3}], s61 offen offset:{2048*(i_&1)} sc1", ("lns",))
    st.mark(P, sets="5")
    P.wait(vm=[("lns",)]); st.mark(P, sets="5")
    P(f"buffer_store_dword v{vOne}, off, s[{sWS}:{sWS+3}], s92 sc1")
    P("s_branch L_setup")
    vmw0 = list(P.vm)
    rest_dma = [dma(c) for c in range(4, PRE)]
    P("L_other:")
    P("v_subrev_u32 v218, 64, v0"); P("v_lshrrev_b32 v219, 3, v218"); P("v_and_b32 v218, 7, v218"); P("v_mul_u32_u24 v221, 0xaab, v219"); P("v_lshrrev_b32 v221, 15, v221")
    P("v_mul_u32_u24 v222, 12, v221"); P("v_sub_u32 v219, v219, v222"); P("v_lshl_add_u32 v218, v219, 5, v218"); P("v_add_u32 v218, 128, v218"); P("s_movk_i32 s100, 9216"); P("v_mul_lo_u32 v218, v218, s100")
    P("v_cmp_eq_u32 vcc, 0, v221"); P("v_mov_b32 v219, 0x10000000"); P("s_nop 0"); P("v_cndmask_b32 v222, v219, v218, vcc"); P("v_cndmask_b32 v218, v218, v219, vcc")
    P(f"buffer_load_dword v221, v222, s[{sWG}:{sWG+3}], s{sFd} offen"); P(f"buffer_load_dword v223, v218, s[{sWU}:{sWU+3}], s{sFd} offen")
    for k_, u in enumerate(rest_dma):
        if k_ % opt.batch == 0: P(f"s_waitcnt vmcnt({opt.bwait})")
        for x in u: P(*x)
    P(f"v_add_u32 v{vOne}, 1, v{vOne}")
    P("L_setup:"); P.vm = vmw0
    srd(P, sK, 88, 89, 8388608); srd(P, sV, 90, 91, 8388608);
    P(f"s_lshl_b32 s{sW2k}, s3, 11"); P(f"s_lshl_b32 s{sQb}, s5, 8")
    P("s_mul_i32 s88, s7, 9"); P("s_mul_i32 s89, s6, 5"); P("s_add_u32 s89, s89, s88")
    for t in range(4):
        P(f"s_xor_b32 s100, s63, {t}"); P("s_add_u32 s100, s100, s60"); P(f"s_mul_i32 s100, s100, 272")
        P(f"s_add_u32 s101, s100, s89"); P(f"s_lshl_b32 s101, s101, 10"); P(f"s_add_u32 s{sH[t]}, s101, {ACT_OFF + 128*1024}")
        if t < 2: P(f"s_add_u32 s101, s100, s88"); P(f"s_lshl_b32 s101, s101, 10"); P(f"s_add_u32 s{sHs[t]}, s101, {ACT_OFF + 132*1024}")
        P(f"s_lshl_b32 s101, s5, 2"); P("s_add_u32 s101, s101, s100"); P("s_lshl_b32 s101, s101, 10"); P(f"s_add_u32 s{sO[t]}, s101, {ACT_OFF}")
    P(f"s_mul_i32 s{sKVb}, s7, 524288"); P(f"s_add_u32 s{sKVb}, s{sKVb}, {1536*256}")
    P(f"s_mov_b32 s{sC_nl2e}, {hex(f2u(-LOG2E))}"); P(f"s_mov_b32 s{sC_qs}, {hex(f2u(LOG2E * 128 ** -0.5))}")
    P("s_lshr_b32 s88, s5, 3"); P("s_and_b32 s89, s5, 7"); P(f"s_lshr_b32 s{sRole}, s89, 2"); P("s_and_b32 s90, s5, 3")
    P("s_mul_i32 s100, s88, 32"); P("s_mul_i32 s101, s88, 36"); P("s_add_u32 s91, s101, 128")
    P(f"s_cmp_eq_u32 s{sRole}, 0")
    P(f"s_cselect_b32 s{sW2}, s94, s76"); P(f"s_cselect_b32 s{sW2+1}, s95, s77"); P(f"s_mov_b32 s{sW2+2}, 5308416"); P(f"s_cselect_b32 s{sW2+2}, 4718592, s{sW2+2}")
    P(f"s_cselect_b32 s101, s100, s101"); P(f"s_cselect_b32 s91, s100, s91")
    P(f"s_cselect_b32 s{sRot}, s89, 0"); P(f"s_cselect_b32 s{sMask}, 7, 15"); P(f"s_cselect_b32 s{sEarly}, 0x10000000, 0")
    P(f"s_and_b32 s{sW2+1}, s{sW2+1}, 0xffff"); P(f"s_mov_b32 s{sW2+3}, 0x20000")
    P("s_mul_i32 s100, s60, 272"); P("s_add_u32 s100, s100, s91"); P("s_lshl_b32 s100, s100, 10"); P(f"s_add_u32 s{sBb}, s100, {ACT_OFF}"); P(f"s_add_u32 s{sEarly}, s{sEarly}, s{sBb}")
    P("s_add_u32 s101, s101, s3"); P(f"s_mul_i32 s101, s101, {32*1152}"); P("s_mul_i32 s100, s90, 288"); P(f"s_add_u32 s{sWb}, s101, s100")
    P(f"s_mul_i32 s{sLw}, s3, 9216")
    nsh = 4 if opt.map1 == "4x8" else 8
    P(f"s_sub_u32 s{sGb}, s101, s{sLw}"); P(f"s_mul_i32 s100, s{sLw}, 3"); P(f"s_sub_u32 s{sGb}, s{sGb}, s100")
    P(f"s_and_b32 s100, s4, {nsh-1}"); P("s_lshl_b32 s100, s100, 2"); P("s_add_u32 s100, s100, s90")
    P(f"s_mul_i32 s101, s{sRole}, {72*128*4//nsh}"); P(f"s_add_u32 s101, s101, {576*128*4//nsh}"); P("s_mul_i32 s100, s100, s101"); P(f"s_add_u32 s{sGb}, s{sGb}, s100")
    P(f"s_lshl_b32 s100, s{sRole}, 2"); P("s_add_u32 s7, s88, s100")
    P("s_lshl_b32 s101, s90, 8"); P(f"s_add_u32 s{sPF}, s{sFl}, s101"); P(f"s_add_u32 s{sPF}, s{sPF}, 2048"); P("s_lshl_b32 s101, s7, 2"); P(f"s_add_u32 s{sPFo}, s{sPF}, s101")
    P("s_lshl_b32 s100, s89, 2")
    P("s_cmp_eq_u32 s5, 0"); P(f"s_cselect_b32 s95, s{sFl}, 0x10000000")
    P("s_lshl_b32 s101, s88, 8"); P(f"s_add_u32 s{sFl}, s{sFl}, s101"); P(f"s_add_u32 s{sFl}, s{sFl}, 512"); P(f"s_add_u32 s{sFlo}, s{sFl}, s100")
    P("s_lshl_b32 s100, s4, 2"); P(f"s_add_u32 s{sTile}, s100, s90")
    P(f"s_lshl_b32 s100, s{sTile}, 3"); P("s_add_u32 s100, s100, s7"); P("s_lshl_b32 s100, s100, 2"); P("s_add_u32 s100, s100, s3"); P("s_mul_i32 s100, s100, 18432")
    P(f"s_add_u32 s100, s100, {PART_OFF}"); P("s_lshl_b32 s101, s6, 10"); P(f"s_add_u32 s{sPa}, s100, s101"); P("s_xor_b32 s101, s101, 1024"); P(f"s_add_u32 s{sPb}, s100, s101")
    P(f"s_mov_b32 s100, {(2**32 + 17) // 18}"); P("s_movk_i32 s101, 1152")
    for i in range(9):
        P(f"v_add_u32 v41, {64*i}, v{L_}"); P("v_mul_hi_u32 v42, v41, s100"); P("v_mul_u32_u24 v43, 18, v42"); P("v_sub_u32 v43, v41, v43")
        P("v_mul_lo_u32 v42, v42, s101"); P(f"v_lshl_add_u32 v{48+i}, v43, 4, v42")
    P(f"v_lshrrev_b32 v42, 2, v{L_}"); P("s_movk_i32 s101, 288"); P("v_mul_lo_u32 v42, v42, s101"); P(f"v_and_b32 v43, 3, v{L_}"); P("v_lshl_add_u32 v42, v43, 3, v42")
    for k in range(3): P(f"v_add_u32 v{57+k}, {16384 + 65536*k}, v42")
    for t in range(4):
        P(f"s_xor_b32 s100, s63, {t}"); P(f"s_mul_i32 s100, s100, {272*1024}"); P(f"v_add_u32 v{60+t}, s100, v{vLane16}")
    P(f"v_lshlrev_b32 v{vPark}, 6, v0"); P(f"v_add_u32 v{vPark}, {PARK}, v{vPark}")
    for k in range(4): P(f"ds_write_b128 v{vPark}, {v(48+4*k,4)} offset:{16*k}")
    P("s_lshl_b32 s100, s3, 4")
    P(f"v_lshrrev_b32 v41, 3, v{L_}"); P("v_add_u32 v42, s100, v41"); P("v_lshlrev_b32 v42, 13, v42")
    P(f"v_lshrrev_b32 v43, 2, v{L_}"); P("v_lshrrev_b32 v44, 1, v41"); P("v_xor_b32 v43, v43, v44"); P("v_and_b32 v43, 1, v43"); P("v_lshl_add_u32 v42, v43, 6, v42")
    P(f"v_and_b32 v43, 3, v{L_}"); P(f"v_lshl_add_u32 v{vQ0}, v43, 4, v42"); P(f"v_add_u32 v{vQ1}, 0x10000, v{vQ0}")
    P("s_lshl_b32 s100, s3, 4")
    P(f"v_lshrrev_b32 v41, 2, v{L_}"); P("v_add_u32 v42, s100, v41"); P("s_movk_i32 s101, 9216"); P("v_mul_lo_u32 v42, v42, s101")
    P(f"v_lshrrev_b32 v43, 1, v{L_}"); P("v_lshrrev_b32 v44, 3, v41"); P("v_xor_b32 v43, v43, v44"); P("v_and_b32 v43, 1, v43"); P("v_lshl_add_u32 v42, v43, 5, v42")
    P(f"v_and_b32 v43, 1, v{L_}"); P(f"v_lshl_add_u32 v{vF}, v43, 4, v42")
    P(f"v_lshrrev_b32 v41, 4, v{L_}"); P(f"v_bfe_u32 v42, v{L_}, 2, 2"); P(f"v_and_b32 v43, 3, v{L_}")
    P("v_lshl_add_u32 v44, v41, 3, v42")
    P("v_lshlrev_b32 v45, 6, v44"); P("v_lshl_add_u32 v45, v43, 3, v45"); P("v_and_b32 v46, 1, v41"); P(f"v_lshl_add_u32 v{vFb[0][0]}, v46, 5, v45")
    P(f"v_xor_b32 v{vFb[0][1]}, 32, v{vFb[0][0]}"); P(f"v_add_u32 v{vFb[1][0]}, 0x10000, v{vFb[0][0]}"); P(f"v_add_u32 v{vFb[1][1]}, 0x10000, v{vFb[0][1]}")
    P("v_lshlrev_b32 v45, 7, v44"); P("v_lshl_add_u32 v45, v43, 4, v45"); P("v_lshrrev_b32 v46, 1, v42"); P(f"v_lshl_add_u32 v{vQb[0][0]}, v46, 6, v45")
    P(f"v_xor_b32 v{vQb[0][1]}, 64, v{vQb[0][0]}"); P(f"v_add_u32 v{vQb[1][0]}, 0x10000, v{vQb[0][0]}"); P(f"v_add_u32 v{vQb[1][1]}, 0x10000, v{vQb[0][1]}")
    P("v_lshlrev_b32 v45, 7, v44"); P("v_lshl_add_u32 v45, v43, 3, v45"); P("v_lshrrev_b32 v46, 1, v42"); P("v_and_b32 v47, 1, v41"); P("v_lshl_add_u32 v46, v47, 1, v46")
    P(f"v_lshl_add_u32 v{vDb[0][0]}, v46, 5, v45")
    for b in range(1, 4): P(f"v_xor_b32 v{vDb[0][b]}, {32*b}, v{vDb[0][0]}")
    for b in range(4): P(f"v_add_u32 v{vDb[1][b]}, 0x10000, v{vDb[0][b]}")
    kvaddr = [f"v_lshrrev_b32 v32, 4, v{vLane16}", "v_lshrrev_b32 v33, 4, v32", f"v_lshrrev_b32 v39, 8, v{vPark}", "v_and_b32 v39, 0x18, v39" if False else "v_bfe_u32 v39, v39, 4, 2",
              "v_lshl_add_u32 v33, v39, 3, v33", "v_and_b32 v34, 15, v32"]
    for i, (rk, rv) in enumerate(((vK0, vV0), (vK1, vV1))):
        if i: kvaddr.append("v_add_u32 v33, 4, v33")
        kvaddr += ["v_xor_b32 v35, v34, v33", "v_and_b32 v35, 15, v35", "v_lshlrev_b32 v35, 4, v35", f"v_lshl_add_u32 v{rk}, v33, 8, v35",
                   "v_lshrrev_b32 v35, 1, v34", "v_xor_b32 v35, v35, v33", "v_and_b32 v35, 7, v35", "v_lshlrev_b32 v35, 5, v35",
                   "v_and_b32 v36, 1, v34", "v_lshl_add_u32 v35, v36, 4, v35", f"v_lshl_add_u32 v{rv}, v33, 8, v35"]
    kvaddr += ["v_lshrrev_b32 v33, 4, v32", "v_bfe_u32 v34, v32, 2, 2", "v_and_b32 v35, 3, v32",
               "v_and_b32 v37, 15, v32", "v_xor_b32 v38, v33, v37", "v_lshlrev_b32 v38, 4, v38", "v_lshl_add_u32 v38, v37, 8, v38", f"v_add_u32 v{vKb[0]}, 0x10000, v38"]
    kvaddr += [f"v_xor_b32 v{vKb[s_]}, {64*s_}, v{vKb[0]}" for s_ in range(1, 4)]
    kvaddr += ["v_lshl_add_u32 v36, v33, 2, v34", "v_and_b32 v37, 7, v36", "v_lshlrev_b32 v37, 5, v37", "v_lshl_add_u32 v37, v36, 8, v37", f"v_lshl_add_u32 v{vVb[0]}, v35, 3, v37"]
    kvaddr += [f"v_xor_b32 v{vVb[d]}, {32*d}, v{vVb[0]}" for d in range(1, 8)]
    P("s_waitcnt lgkmcnt(0)")
    st.mark(P, sets="5")
    P("s_cmp_lg_u32 s3, 0"); P("s_cbranch_scc1 L_ok_ln")
    P(f"buffer_load_dword v216, v220, s[{sWS}:{sWS+3}], s93 offen sc1", ("lnp",))
    for u in rest_dma:
        for x in u: P(*x)
    st.mark(P, sets="5")
    P.wait(vm=[("lnp",)]); st.mark(P, sets="5"); P(f"v_cmp_ne_u32 vcc, v{vOne}, v216"); P("s_nop 1"); P("s_cbranch_vccnz L_spin_ln")
    P("L_ok_ln:")
    P(f"s_waitcnt vmcnt({2 * len(rest_dma)})"); P("s_barrier")
    st.mark(P, sets="145")
    if opt.stamps and opt.sset == "5":
        st.mark(P, True); st.flush(P, sWS, 229); P("L_flush5:"); P(f"s_mov_b32 s{sWS+2}, {WS_USED}"); opt.stamps = False
    for need, u in units[:opt.pro_n]:
        for x in u[0](*u[1:]): P(*x)
    P(f"buffer_store_dword v{vOne}, off, s[{sWS}:{sWS+3}], s95 offset:3968 sc1")

    S = Sched2(); wins = []; fragc = [0]
    def add_window(mf, reads, chunk, att=False):
        start = len(S.M)
        for (t, vm, lg) in mf: S.mfma(t, vm, lg)
        wins.append(dict(start=start, n=len(mf), reads=reads, chunk=chunk, att=att))
    span = {}
    def add_step(cn, ci):
        ch = chains[cn]
        for b in range(4):
            fr = [AR + 4 * ((fragc[0] + s_) & 7) for s_ in range(2)]; fragc[0] += 2
            reads = []; cs = []
            for s_ in range(2):
                c = 2 * ci + s_ if ch["kind"] == "D" else ch["c0"] + ci
                L = slot_addr(c); half = L >> 16; Lo = L & 0xffff; cs.append(c)
                for t in range(2):
                    if ch["kind"] == "D": base = vDb[half][2 * ch["S"] + (b & 1)]; off = Lo + (b >> 1) * 4096 + 512 * t
                    elif ch["kind"] == "F": base = vFb[half][b & 1]; off = Lo + (b >> 1) * 4096 + (32 * s_ + 4 * t) * 64
                    else: base = vQb[half][b >> 1]; off = Lo + (32 * s_ + 4 * t) * 128 + 8 * (b & 1)
                    reads.append((f"ds_read_b64_tr_b16 {v(fr[s_]+2*t,2)}, v{base} offset:{off}", ("r", cn, ci, b)))
            mf = []
            for tb in ch["tbs"]:
                for s_ in range(2):
                    ks = 2 * ci + s_; A = ch["acc"](b, tb)
                    vm = [("x", tb2, 2 * ci + s2) for tb2 in ch["tbs"] for s2 in range(2)] if (b == 0) else []
                    mf.append((f"{MF} {v(A,4)}, {v(fr[s_],4)}, {xn1(tb, ks)}, {'0' if ks == 0 else v(A, 4)}", vm, [("r", cn, ci, b)]))
            add_window(mf, reads, cs[1]); wins[-1]["chunks"] = cs
    def add_chain(cn, steps=range(9)):
        c_start = len(S.M)
        for ci in steps: add_step(cn, ci)
        span[cn] = (c_start, len(S.M))
    X_, Y_ = SETA, SETB
    def Qf(s_, tb): return acc(X_, 2 * s_, tb) if s_ < 2 else acc(Y_, 2 * (s_ - 2), tb)
    def Sr(p, kb, tb): return (acc(X_, 1 + 2 * kb, tb) if p == 1 else XNV + 16 * kb + 4 * tb)
    def Pr(p, tb): return acc(Y_, 1 + 2 * p, tb)
    NEGM = AR + 16; vThr = vTmp + 9; KF = 128; VF = 160
    ER = list(range(40, 48)) + list(range(56, 60))
    def Or(db, tb): return 16 * db + 4 * tb
    def qk_window(i, kb, czero):
        c = KV0 + 2 * i; Lo = slot_addr(c) & 0xffff
        reads = [(f"ds_read_b128 {a_(KF+16*kb+4*s_,4)}, v{vKb[s_]} offset:{Lo + 4096*kb}", ("k", i, kb)) for s_ in range(4)]
        mf = []
        for tb in range(4):
            for s_ in range(4):
                D = v(Sr(i & 1, kb, tb), 4)
                Cc = D if s_ else ("0" if czero else v(NEGM + 4 * tb, 4))
                mf.append((f"{MF} {D}, {a_(KF+16*kb+4*s_,4)}, {v(Qf(s_, tb),4)}, {Cc}", [], [("k", i, kb)]))
        add_window(mf, reads, c, True)
    def pv_window(i, h):
        c = KV0 + 2 * i + 1; Lo = slot_addr(c) & 0xffff
        reads = []; mf = []
        for db in range(4 * h, 4 * h + 4):
            for t in range(2): reads.append((f"ds_read_b64_tr_b16 {a_(VF+4*db+2*t,2)}, v{vVb[db]} offset:{Lo + 4096*t}", ("v", i, h)))
            for tb in range(4):
                D = a_(Or(db, tb), 4)
                mf.append((f"{MF} {D}, {a_(VF+4*db,4)}, {v(Pr(i&1, tb),4)}, {'0' if i == 0 else D}", [], [("v", i, h)]))
        add_window(mf, reads, c, True)
    for j_ in range(NJ): add_step("DA", j_); add_step("DB", j_)
    add_chain("DA", range(NJ, 9)); add_chain("DB", range(NJ, 9))
    for cn in ("X", "Y", "Q1", "Q2", "H"): add_chain(cn)
    att0 = len(S.M); it_span = []
    qk_window(0, 0, True); qk_window(0, 1, True)
    s0 = len(S.M); qk_window(1, 0, True); qk_window(1, 1, True); it_span.append((s0, len(S.M)))
    for i in range(1, 16):
        s0 = len(S.M)
        if i < 15: qk_window(i + 1, 0, False)
        pv_window(i - 1, 0)
        if i < 15: qk_window(i + 1, 1, False)
        pv_window(i - 1, 1)
        it_span.append((s0, len(S.M)))
    pv15 = len(S.M); pv_window(15, 0); pv_window(15, 1)
    att1 = len(S.M)
    fragc[0] = 0
    NM = len(S.M)
    head_reads = []
    for w, W in enumerate(wins):
        if w < 2: head_reads.append(W); continue
        W["g0"] = wins[w - 2]["start"]; W["g1"] = W["g0"] + wins[w - 2]["n"]
    lastuse = {}
    for w, W in enumerate(wins):
        if W["att"]:
            key = W["reads"][0][0].split()[1]
            if key in lastuse:
                pw = wins[lastuse[key]]
                if W["g0"] < pw["start"] + pw["n"] - 1:
                    W["g0"] = pw["start"] + pw["n"] - 1
                    W["g1"] = wins[lastuse[key] + 1]["start"] + wins[lastuse[key] + 1]["n"] - 4
            lastuse[key] = w
    seen = set(); bar_gap = {}; extra_wait = {}
    def mkwait(g): return lambda P_: P_.wait(vm=[("c", c) for c in gch(g)] + extra_wait.get(g, []))
    for W in wins:
        g = gof(W["chunk"])
        for gg in range(g + 1):
            if gg not in seen:
                seen.add(gg)
                if "g0" in W:
                    S.at(W["g0"] - 1, mkwait(gg)); S.at(W["g0"], "s_barrier" if not opt.nobar else "s_nop 0"); bar_gap[gg] = W["g0"]
                else: bar_gap[gg] = -1
        if "g0" in W:
            n = W["g1"] - W["g0"]; nr = len(W["reads"])
            for k, (t, tag) in enumerate(W["reads"]):
                g_ = W["g0"] + (k * n) // nr
                if att0 <= g_ < att1 and n >= 2 * nr - 1 and ((g_ - att0) & 1) == 0 and g_ + 1 < W["start"] - 1: g_ += 1
                S.at(g_, t, tag)
    last_use_gap = {}
    for W in wins:
        for c_ in W.get("chunks", [W["chunk"]]): last_use_gap[c_] = W["start"] + W["n"] - 1

    def p2slot(g): return 16384 + ((3 - g) & 3) * 36864
    def p2_dma(g, gonly=False):
        if g >= 9: return []
        out = [(x, None) for x in (f"s_add_u32 s{sGw}, s{sRot}, {g}", f"s_and_b32 s{sGw}, s{sGw}, s{sMask}", f"s_mul_i32 s{sGw}, s{sGw}, {128*1152}",
                                   f"s_add_u32 s{sGw}, s{sGw}, s{sWb}" if not opt.now else f"s_mov_b32 s{sGw}, 0x10000000")]
        if gonly: out += [(f"s_sub_u32 s100, s{sEarly}, s{sBb}", None), (f"s_add_u32 s{sGw}, s{sGw}, s100", None)]
        for i in range(9):
            out.append((f"s_add_u32 m0, s{sLw}, {p2slot(g) + 1024*i}", None))
            out.append((f"buffer_load_dwordx4 v{vW[i]}, s[{sW2}:{sW2+3}], s{sGw} offen lds", ("w", g)))
        return out
    BS = [("a", 192), ("a", 208), ("a", 224), ("a", 240), ("v", 160), ("v", 192), ("v", 224), ("v", 240), ("a", 144), ("a", 160), ("a", 176), ("v", 176), ("v", 208)]
    def bf(c, tb):
        f, r = BS[c % 13]; return R(f, r + 4 * tb, 4)
    def p2_bload(cs, early=False):
        out = []; lastg = None
        for c in cs:
            if c >= 36: continue
            if not early and (c >> 2) != lastg:
                lastg = c >> 2
                out += [(x, None) for x in (f"s_add_u32 s{sGb}, s{sRot}, {lastg}", f"s_and_b32 s{sGb}, s{sGb}, s{sMask}", f"s_lshl_b32 s{sGb}, s{sGb}, 12",
                                            f"s_add_u32 s{sGb}, s{sGb}, s{sBb}" if not opt.nob else f"s_mov_b32 s{sGb}, 0x10000000")]
            if early and c == 4: out.append((f"s_add_u32 s{sEarly}, s{sEarly}, 4096", None))
            for tb in range(4): out.append((f"buffer_load_dwordx4 {bf(c, tb)}, v{vB[tb]}, s[{sWS}:{sWS+3}], s{sEarly if early else sGb} offen offset:{1024*(c&3)}{opt.scl}", ("b", c, tb)))
        return out
    spins = []
    def poll_issue(sline, off, vt, tag): return (f"buffer_load_dword v{vt}, v{vPoll}, s[{sWS}:{sWS+3}], s{sline} offen offset:{off} sc1", tag)
    def spin_code(name, sline, off, vt, vp=vPoll):
        spins.append(f"""L_spin_{name}:
s_mov_b32 s{sSpin}, 0x40000
L_spin2_{name}:
buffer_load_dword v{vt}, v{vp}, s[{sWS}:{sWS+3}], s{sline} offen offset:{off} sc1
s_waitcnt vmcnt(0)
v_cmp_ne_u32 vcc, v{vOne}, v{vt}
s_sub_u32 s{sSpin}, s{sSpin}, 1
s_cbranch_scc1 L_ok_{name}
s_nop 0
s_cbranch_vccz L_ok_{name}
s_sleep 1
s_branch L_spin2_{name}""")
    def poll_check(S_, g, name, sline, off, vt, tag):
        S_.at(g, lambda P_: P_.wait(vm=[tag])); S_.at(g, f"v_cmp_ne_u32 vcc, v{vOne}, v{vt}")
        S_.at(g + 2, f"s_cbranch_vccnz L_spin_{name}"); S_.at(g + 2, f"L_ok_{name}:", c=0)

    vP = 0
    spin_code("ln", 93, 0, 216, 220)
    gchk = it_span[11][0] + 30
    def wpre(k): return [(f"s_add_u32 s{sGb}, s{sGb}, 32768", None) if k else (f"s_nop 0", None), (f"buffer_load_dword v55, v54, s[{sW2}:{sW2+3}], s{sGb} offen", None)]
    timed = [(it_span[2 + 2 * k][0] + 8, (wpre, k)) for k in range(3)] if opt.wpre else []
    TW0 = min(b for b in bar_gap.values() if b > last_use_gap[79]) + 1
    assert it_span[7][0] < TW0 < it_span[10][0] + 20
    timed += [(TW0, (p2_dma, 0)), (it_span[10][0] + 20, (lambda: [poll_issue(sFl, 0, vP, ("f1",))],))]
    for c in range(4): timed.append((gchk + 3 + 24 * c, (p2_bload, [c], True)))
    timed.append((it_span[13][0] + 24, (p2_dma, 1, True)))
    timed += [(it_span[15][0], (p2_bload, [4, 5], True)), (pv15, (p2_bload, [6, 7], True))]
    poll_check(S, gchk, "f1", sFl, 0, vP, ("f1",)); spin_code("f1", sFl, 0, vP)
    nxt = PRE; gs = sorted(bar_gap); credit = 0.0
    cuts = sorted(set([b for b in bar_gap.values()] + [gchk + 2, it_span[15][0] - 1, pv15 - 1] + list(range(11, 520, 12))))
    cuts = [c_ for k_, c_ in enumerate(cuts) if c_ in bar_gap.values() or c_ > 520 or not any(abs(c_ - b) < 6 for b in bar_gap.values())]
    for idx, b0 in enumerate(cuts):
        ops = []
        g1 = cuts[idx + 1] if idx + 1 < len(cuts) else NM - 2
        lastbar = max(b for b in bar_gap.values() if b <= b0); g = max(k for k in gs if bar_gap[k] == lastbar)
        while late and late[0][0] < g1:
            if nxt < 18 and (prev_occ(nxt) is None or last_use_gap[prev_occ(nxt)] < lastbar) and late[0][1][2] >= nxt - 6:
                ops += dma(nxt); nxt += 1; continue
            u = late.pop(0)[1]; ops += u[0](*u[1:])
        credit = min(credit + (g1 - b0) / opt.dpace, 2 + (g1 - b0) / opt.dpace) if not late else 0.0
        while not late and nxt < NCH and (prev_occ(nxt) is None or last_use_gap[prev_occ(nxt)] < lastbar) and (credit >= 1 or bar_gap[gof(nxt)] < g1 + 100):
            credit -= 1
            ops += dma(nxt) if not opt.nodma else []; nxt += 1
        while timed and timed[0][0] < g1:
            u = timed.pop(0)[1]; ops += u[0](*u[1:])
        if ops: S.spread(ops, b0 + 1, max(g1 - 1, b0 + 2))
    assert nxt == NCH and not late and not timed, (nxt, late, timed)
    pk = [60, 8, 12, 4]
    S.spread([(f"ds_read_b128 {v(pk[k],4)}, v{vPark} offset:{16*(3,1,2,0)[k]}", ("park",)) for k in range(4)], it_span[1][0] + 1, it_span[1][0] + 24)
    S.at(it_span[2][0], lambda P_: P_.wait(lg=[("park",)]))

    def ffn_epi(cn):
        ch = chains[cn]; ops = []; T = vTmp
        for n_, tb in enumerate(ch["tbs"]):
            stg = T + 16 + 4 * (n_ & 1)
            vals = [(ch["acc"](b, tb) + r, ch["acc"](2 + b, tb) + r) for b in range(2) for r in range(4)]
            for step in range(8 + 5):
                if step < 8: ops.append(f"v_mul_f32 v{T+step}, s{sC_nl2e}, v{vals[step][0]}")
                e = step - 1
                if 0 <= e < 8: ops.append(f"v_exp_f32 v{T+e}, v{T+e}")
                e = step - 3
                if 0 <= e < 8: ops.append(f"v_rcp_f32 v{T+e}, v{T+e}")
                e = step - 2
                if 0 <= e < 8: ops.append(f"v_add_f32 v{T+e}, 1.0, v{T+e}"); ops.append(f"v_mul_f32 v{T+8+e}, v{vals[e][0]}, v{vals[e][1]}")
                e = step - 5
                if 0 <= e < 8:
                    ops.append(f"v_mul_f32 v{T+8+e}, v{T+8+e}, v{T+e}")
                    if e & 1: ops.append(f"v_cvt_pk_bf16_f32 v{stg+(e>>1)}, v{T+8+e-1}, v{T+8+e}")
            so = ch["hs"][n_]
            if ch["hadd"] is not None: ops.append(f"s_add_u32 s101, s{so}, s{ch['hadd']}"); so = 101
            ops.append((f"buffer_store_dwordx4 {v(stg,4)}, v{vLane16}, s[{sWS}:{sWS+3}], s{so} offen offset:{ch['hoff']}{SC}", ("h", cn)))
        return ops
    def q_epi(ch):
        ops = []
        for s2 in range(2):
            for tb in range(4):
                A0 = acc(ch["base"], 2 * s2, tb); A1 = acc(ch["base"], 2 * s2 + 1, tb)
                for r in range(4): ops.append(f"v_mul_f32 v{A0+r}, s{sC_qs}, v{A0+r}")
                for r in range(4): ops.append(f"v_mul_f32 v{A1+r}, s{sC_qs}, v{A1+r}")
                ops += [f"v_cvt_pk_bf16_f32 v{A0}, v{A0}, v{A0+1}", f"v_cvt_pk_bf16_f32 v{A0+1}, v{A0+2}, v{A0+3}",
                        f"v_cvt_pk_bf16_f32 v{A0+2}, v{A1}, v{A1+1}", f"v_cvt_pk_bf16_f32 v{A0+3}, v{A1+2}, v{A1+3}"]
        return ops
    for prev, host in (("DA", "DB"), ("DB", "X"), ("X", "Y"), ("Y", "Q1")): S.spread(ffn_epi(prev), span[host][0] + 6, span[host][1] - 4)
    S.spread(q_epi(chains["Q1"]) + kvaddr, span["Q2"][0] + 6, span["Q2"][0] + 200) if False else None
    S.spread(kvaddr, span["Y"][0] + 40, span["Y"][1] - 4)
    S.spread(q_epi(chains["Q1"]), span["Q2"][0] + 6, span["Q2"][1] - 4)
    S.spread(q_epi(chains["Q2"]), span["H"][0] + 8, span["H"][1] - 2)
    hepi = ffn_epi("H"); nh = opt.hcut
    S.spread(hepi[:nh], att0 + 5, att0 + 32)
    S.at(att0 + 31, lambda P_: [P_(*((x,) if isinstance(x, str) else x)) for x in hepi[nh:]], c=3)
    gp = min(g for g in gs if bar_gap[g] > it_span[2][0])
    extra_wait[gp] = [("h", cn) for cn in ("DA", "DB", "X", "Y", "H")]
    S.spread([f"buffer_store_dword v{vOne}, off, s[{sWS}:{sWS+3}], s{sFlo} sc1"], bar_gap[gp] + 1, bar_gap[gp] + 12)

    def xreduce4(op, r, t):
        o = []
        for sw in ("v_permlane16_swap_b32", "v_permlane32_swap_b32"):
            o += [f"v_mov_b32 v{t+k}, v{r+k}" for k in range(4)] + [f"{sw} v{r+k}, v{t+k}" for k in range(4)] + [f"{op} v{r+k}, v{r+k}, v{t+k}" for k in range(4)]
        return o
    def max8(p, tb, d):
        a = Sr(p, 0, tb); b = Sr(p, 1, tb)
        return [f"v_max3_f32 v{d}, v{a}, v{a+1}, v{a+2}", f"v_max3_f32 v{d}, v{d}, v{a+3}, v{b}", f"v_max3_f32 v{d}, v{d}, v{b+1}, v{b+2}", f"v_max_f32 v{d}, v{d}, v{b+3}"]
    def sm_parts(i, ladd=True):
        p = i & 1; E = lambda k: ER[k % len(ER)]
        exps = []; plain = []
        for k in range(32):
            tb, e = k >> 3, k & 7
            exps.append(f"v_exp_f32 v{E(k)}, v{Sr(p, e >> 2, tb) + (e & 3)}")
            if e == 0:
                if ladd: plain.append((f"v_add_f32 v{vL+tb}, v{vL+tb}, v{vTS+tb}", -1, k - 1))
            elif e == 1: plain.append((f"v_add_f32 v{vTS+tb}, v{E(k-1)}, v{E(k)}", k, k - 2))
            else: plain.append((f"v_add_f32 v{vTS+tb}, v{vTS+tb}, v{E(k)}", k, k - 1 - (k & 1)))
            if e & 1: plain.append((f"v_cvt_pk_bf16_f32 v{Pr(p, tb)+(e>>1)}, v{E(k-1)}, v{E(k)}", k, k))
        return exps, plain
    def softmax(i, ladd=True):
        exps, plain = sm_parts(i, ladd); ops = []; j = 0
        for k in range(34):
            if k < 32: ops.append(exps[k])
            while j < len(plain) and plain[j][1] <= k - 2: ops.append(plain[j][0]); j += 1
        return ops
    def check_ops():
        t = vTmp + 8
        return [f"v_max3_f32 v{t}, v{vTS}, v{vTS+1}, v{vTS+2}", f"v_max_f32 v{t}, v{t}, v{vTS+3}", f"v_cmp_nle_f32 vcc, v{t}, v{vThr}"]
    def pack_softmax(i, a0, a1):
        exps, plain = sm_parts(i)
        plain = plain + [(x, 31, 31) for x in check_ops()]
        for extra in range(0, 200):
            n = a1 - a0; cap = [2] * n
            for q in range(extra): cap[((q * n) // extra + n // (2 * extra)) % n if extra <= n else q % n] += 1
            place = []; ke = 0; kp = 0; egap = {}; rel = -1
            for g in range(a0, a1):
                free = cap[g - a0] - S.used(g)
                while free > 0:
                    pready = kp < len(plain) and (plain[kp][1] < 0 or (plain[kp][1] in egap and egap[plain[kp][1]] <= g - 2))
                    eok = ke < 32 and free >= 2 and (ke < len(ER) or rel >= ke - len(ER))
                    if eok and not (pready and free == 3 and False):
                        place.append((g, exps[ke])); egap[ke] = g; ke += 1; free -= 2
                    elif pready:
                        place.append((g, plain[kp][0])); rel = max(rel, plain[kp][2]); kp += 1; free -= 1
                    else: break
            if ke == 32 and kp == len(plain):
                for g, x in place: S.at(g, x)
                return extra
        assert False
    init = [f"v_mov_b32 v{vThr}, {hex(f2u(opt.thr))}"]
    for tb in range(4): init += max8(0, tb, vTS + tb)
    init += xreduce4("v_max_f32", vTS, vTmp + 10)
    for tb in range(4):
        for r in range(4): init.append(f"v_sub_f32 v{NEGM+4*tb+r}, 0, v{vTS+tb}")
        init.append(f"v_mov_b32 v{vL+tb}, 0")
        for kb in range(2):
            for r in range(4): init.append(f"v_sub_f32 v{Sr(0,kb,tb)+r}, v{Sr(0,kb,tb)+r}, v{vTS+tb}")
    a0, a1 = it_span[0]
    S.at(a0 + 3, "v_lshlrev_b32 v54, 7, v0")
    S.spread(init, a0 + 5, a1)
    fix1 = [f"v_add_f32 v{Sr(1,kb,tb)+r}, v{Sr(1,kb,tb)+r}, v{NEGM+4*tb}" for kb in range(2) for tb in range(4) for r in range(4)]
    sm0 = softmax(0, ladd=False)
    S.at(a1 - 1, lambda P_: ([P_(x) for x in sm0], [P_(x) for x in fix1], P_("s_nop 1")), c=3)
    extras = []
    for i in range(1, 16):
        a0, a1 = it_span[i]
        extras.append(pack_softmax(i, a0, a1 - 1))
        S.at(a1 - 1, f"s_cbranch_vccnz L_rare{i}", c=3); S.at(a1 - 1, f"L_back{i}:", c=3)
    fin = [f"v_add_f32 v{vL+tb}, v{vL+tb}, v{vTS+tb}" for tb in range(4)] + xreduce4("v_add_f32", vL, vTmp + 10) + [f"v_rcp_f32 v{vL+tb}, v{vL+tb}" for tb in range(4)]
    S.spread(fin, pv15 + 1, att1 - 2)
    XO = SETA
    ostores = [(f"buffer_store_dwordx4 {v(XO + 16 * s_ + 4 * tb,4)}, v{vLane16}, s[{sWS}:{sWS+3}], s{sO[tb]} offen offset:{1024*s_}{SC}", ("o",)) for s_ in range(4) for tb in range(4)]
    def o_epilogue(P_):
        st.mark(P_, sets="1234")
        k = 0
        for s_ in range(4):
            for tb in range(4):
                T = (40, 176, 184)[k % 3]; D = XO + 16 * s_ + 4 * tb
                for u in range(2):
                    for r in range(4): P_(f"v_accvgpr_read_b32 v{T+4*u+r}, a{Or(2*s_+u, tb)+r}")
                lp = vL + (tb & ~1); sel = "op_sel_hi:[1,0]" if tb % 2 == 0 else "op_sel:[0,1] op_sel_hi:[1,1]"
                for e in range(4): P_(f"v_pk_mul_f32 {v(T+2*e,2)}, {v(T+2*e,2)}, {v(lp,2)} {sel}")
                for e in range(4): P_(f"v_cvt_pk_bf16_f32 v{D+e}, v{T+2*e}, v{T+2*e+1}")
                if k % (16 // opt.nost) == 16 // opt.nost - 1: P_(*ostores[k // (16 // opt.nost)])
                k += 1
    S.at(att1 - 1, o_epilogue, c=3)

    acc2 = lambda b, tb: 16 * b + 4 * tb
    def rd_addr(g, ks4, t, b):
        A = p2slot(g) + ks4 * 9216 + 16 * t * 288 + 32 * b - 16384
        return vRb[A >> 16], A & 0xffff
    ph0 = fragc[0] & 7
    def p2_windows(S2, order, ph, shifts=(), own=False):
        out = []
        for k, (g, hp, b) in enumerate(order):
            if k in shifts: ph += 2
            fr = [AR + 4 * ((ph + s_) & 7) for s_ in range(2)]; ph += 2
            reads = []
            for s_ in range(2):
                for t in range(2):
                    rb, off = rd_addr(g, 2 * hp + s_, t, b)
                    reads.append((f"ds_read_b64_tr_b16 {v(fr[s_]+2*t,2)}, v{rb} offset:{off}", ("r2", g, hp, b)))
            start = len(S2.M)
            for tb in range(4):
                for s_ in range(2):
                    c = 4 * g + 2 * hp + s_; A = a_(acc2(b, tb), 4)
                    vm = [("b", 4 * g + 2 * hp + s2, tb2) for s2 in range(2) for tb2 in range(4)] if (b == 0 and not (own and g == 0)) else []
                    S2.mfma(f"{MF} {A}, {v(fr[s_],4)}, {v(XO + 16 * c + 4 * tb, 4) if (own and g == 0) else bf(c, tb)}, {'0' if c == 0 else A}", vm, [("r2", g, hp, b)])
            out.append(dict(start=start, reads=reads, g=g, hp=hp, b=b))
        return out
    grp = lambda g: [(g, hp, b) for hp in range(2) for b in range(9)]
    final = [(g, hp, b) for b in range(9) for g in (7, 8) for hp in range(2)]
    def place_reads(S2, wl, first):
        seen_g = set(first)
        for k in range(2, len(wl)):
            W = wl[k]; g0 = wl[k - 2]["start"]
            if W["g"] not in seen_g:
                gg = [W["g"]] if W["g"] != 7 else [7, 8]
                seen_g.update(gg)
                S2.at(g0 - 1, (lambda gg: lambda P_: P_.wait(vm=[("w", x) for x in gg] + p2_extra.get(gg[0], [])))(gg)); S2.at(g0, "s_barrier")
                bar2[W["g"]] = g0
            for q, (t, tag) in enumerate(W["reads"]): S2.at(g0 + 2 * q, t, tag)
    p2_extra = {}; bar2 = {}
    SC_ = Sched2(); order_c = sum((grp(g) for g in range(3, 7)), []) + final
    wc = p2_windows(SC_, order_c, ph0 + 4)
    place_reads(SC_, wc, [3])
    F0 = 144 * 4
    for g in range(3, 7):
        a0 = 144 * (g - 3); a1 = a0 + 144; mid = a0 + 72
        if g == 6:
            SC_.spread(p2_dma(8) + p2_bload([32, 33, 34, 35]), a0, a0 + 110)
        else:
            SC_.spread(p2_bload([4 * g + 8, 4 * g + 9]) + p2_dma(g + 2), a0, mid + 8)
            SC_.spread(p2_bload([4 * g + 10, 4 * g + 11]), mid + 8, a1 - 18)
    def pub_block(b):
        ops = []
        for tp in range(2):
            T = 32 + 12 * tp
            for u in range(2):
                for r in range(4): ops.append(f"v_accvgpr_read_b32 v{T+4*u+r}, a{acc2(b, 2*tp+u)+r}")
            for e in range(4): ops.append(f"v_cvt_pk_bf16_f32 v{T+8+e}, v{T+2*e}, v{T+2*e+1}")
            sp = (sPa, sPb)[tp]
            if b % 2 == 0 and b: ops.append(f"s_add_u32 s{sp}, s{sp}, 4096")
            ops.append((f"buffer_store_dwordx4 {v(T+8,4)}, v{vLane16}, s[{sWS}:{sWS+3}], s{sp} offen offset:{2048*(b&1)}{SC}", ("p", b)))
        return ops
    for b in range(8): SC_.spread(pub_block(b), F0 + 32 * (b + 1) + 5, F0 + 32 * (b + 2))
    NE = opt.ne
    gA = F0 + 32 * (NE + 2) - opt.pa_early
    SC_.at(gA - 1, lambda P_: P_.wait(vm=[("p", b) for b in range(NE)])); SC_.at(gA, "s_barrier")
    SC_.spread([f"buffer_store_dword v{vOne}, off, s[{sWS}:{sWS+3}], s{sPFo} sc1"], gA + 1, gA + 8)
    sX, sOut = sWG, sWU; vXo = 112; XR = 116; sU = [38, 39, 40]; sXo = [41, 42, 43]
    su = []
    for d, p_ in ((sX, sXp), (sOut, sOp)):
        su += [f"s_mov_b32 s{d}, s{p_}", f"s_and_b32 s{d+1}, s{p_+1}, 0xffff", f"s_mov_b32 s{d+2}, 2359296", f"s_mov_b32 s{d+3}, 0x20000"]
    su += [f"v_lshrrev_b32 v114, 4, v{vLane16}", "v_and_b32 v115, 15, v114", "s_movk_i32 s44, 1152", "v_mul_lo_u32 v115, v115, s44", "v_lshrrev_b32 v114, 4, v114",
           f"v_lshl_add_u32 v{vXo}, v114, 3, v115", f"v_add_u32 v{vXo+1}, {16*1152}, v{vXo}",
           f"s_mul_i32 s45, s{sTile}, 576", "s_lshr_b32 s46, s7, 1", "s_mul_i32 s46, s46, 18", "s_add_u32 s45, s45, s46", "s_and_b32 s46, s7, 1", "s_add_u32 s45, s45, s46",
           "s_lshl_b32 s46, s3, 1", "s_add_u32 s45, s45, s46", "s_lshl_b32 s45, s45, 10", f"s_add_u32 s{sU[0]}, s45, {PART_OFF}",
           "s_lshl_b32 s45, s4, 3", "s_add_u32 s45, s45, s7", f"s_mul_i32 s45, s45, {32*1152}", f"s_and_b32 s46, s{sTile}, 3", "s_mul_i32 s46, s46, 288", "s_add_u32 s45, s45, s46",
           "s_lshl_b32 s46, s3, 5", f"s_add_u32 s{sXo[0]}, s45, s46",
           lambda P_: (P_(f"s_cmp_lt_u32 s3, {NE-4}"), P_("s_cselect_b32 s46, 0, 0x10000000")),
           f"s_add_u32 s{sU[1]}, s{sU[0]}, s46", f"s_add_u32 s{sU[1]}, s{sU[1]}, {4*2048}", f"s_add_u32 s{sXo[1]}, s{sXo[0]}, s46", f"s_add_u32 s{sXo[1]}, s{sXo[1]}, {4*32}",
           lambda P_: (P_(f"s_cmp_ge_u32 s3, {NE-5}"), P_("s_cselect_b32 s46, 0, 0x10000000")),
           f"s_add_u32 s{sU[2]}, s{sU[0]}, s46", f"s_add_u32 s{sU[2]}, s{sU[2]}, {5*2048}", f"s_add_u32 s{sXo[2]}, s{sXo[0]}, s46", f"s_add_u32 s{sXo[2]}, s{sXo[2]}, {5*32}"]
    assert NE in (6, 7)
    for q in range(3):
        for u in range(2): su.append((f"buffer_load_dwordx2 {v(XR+4*q+2*u,2)}, v{vXo+u}, s[{sX}:{sX+3}], s{sXo[q]} offen", ("xx",)))
    SC_.spread(su, F0 - 16, F0 + 150)
    oflag = f"buffer_store_dword v{vOne}, off, s[{sWS}:{sWS+3}], s{sFlo} offset:128 sc1"
    def merge(a, b):
        out = []; ia = ib = 0
        while ia < len(a) or ib < len(b):
            if ib >= len(b) or (ia < len(a) and ia * len(b) <= ib * len(a)): out += a[ia]; ia += 1
            else: out += b[ib]; ib += 1
        return out
    def units_of(ops):
        out = [[]]
        for o in ops:
            out[-1].append(o)
            if not o[0].startswith("s_"): out.append([])
        return [u for u in out if u]
    def head(role):
        S2 = Sched2()
        order = grp(0) + (grp(1) if role == "g" else []) + grp(2)
        wl = p2_windows(S2, order, ph0, shifts=() if role == "g" else (6, 12), own=(role == "s"))
        n = len(S2.M)
        ext = wl + [dict(start=n, reads=wc[0]["reads"], g=3), dict(start=n + 8, reads=wc[1]["reads"], g=3)]
        place_reads(S2, ext, [0])
        gp_ = opt.gpub
        if opt.stamps and opt.sset == "2":
            for k_, g_ in enumerate((gp_ - 2, gp_, 287) if role == 'g' else (126, 142, 144)): S2.at(g_, (lambda k_: lambda P_: st.mark(P_, idx=4 + k_))(k_), c=3)
        rest = [[o] for o in ostores[opt.nost:]]
        if role == "g":
            S2.at(gp_ - 1, lambda P_: P_.wait(vm=[("o",)])); S2.at(gp_, "s_barrier")
            S2.spread(ostores[opt.nost:], opt.ghold, gp_ - 26); S2.spread(p2_dma(2), gp_ - 26, gp_ - 1)
            S2.spread([oflag] + p2_bload([8, 9]) + p2_dma(3) + p2_bload([10, 11]), gp_ + 1, 286)
            S2.spread(p2_bload([12, 13, 14, 15]) + p2_dma(4), 288, 368); S2.spread(p2_bload([16, 17, 18, 19]), 368, 414)
        else:
            S2.at(wl[16]["start"] - 1, lambda P_: P_.wait(lg=[("r2", 0, 1, 8)]), c=3)
            S2.at(0, f"s_sub_u32 s{sRot}, s{sRot}, 1")
            S2.spread(p2_dma(2), 1, 36); S2.spread(ostores[opt.nost:], 36, 142)
            def tail(P_):
                for x in p2_dma(3): P_(*x)
                P_.wait(vm=[("o",)]); P_("s_barrier"); P_(oflag)
                P_("s_branch L_spin_fo"); P_("L_ok_fo:"); P_("s_waitcnt vmcnt(0)")
                for x in p2_bload([8, 9, 10, 11]): P_(*x)
            S2.at(143, tail, c=3)
            S2.spread(p2_bload([12, 13, 14, 15]) + p2_dma(4), 144, 224); S2.spread(p2_bload([16, 17, 18, 19]), 224, 270)
        return S2, wl
    spin_code("fo", sFl, 128, vP)
    Sg, wlg = head("g"); Ss, wls = head("s")
    gY = wins[-1]["start"]
    S.at(gY - 1, lambda P_: P_.wait(vm=[("w", 0)])); S.at(gY, "s_barrier")
    for k in range(2):
        for q, (t, tag) in enumerate(wlg[k]["reads"]): S.at(wins[-1]["start"] + 8 * k + 2 * q + 1, t, tag)
    if opt.stamps:
        for g_ in (span["X"][0], span["Q1"][0], att0, it_span[1][0]): S.at(g_, lambda P_: st.mark(P_, sets="1"), c=3)
        for g_ in (0, 64, 128, 192, 256, 320, span["DB"][0], span["X"][0]): S.at(g_, lambda P_: st.mark(P_, sets="4"), c=3)
    for W in head_reads:
        for (t, tag) in W["reads"]: P(t, tag)
    S.emit(P)
    st.mark(P, sets="123")
    P("s_barrier"); P(f"s_cmp_eq_u32 s{sRole}, 0"); P("s_cbranch_scc1 L_p2_s")
    pre_len = len(P.L); vm0, lg0 = list(P.vm), list(P.lg)
    Sg.emit(P); P("s_branch L_p2_join")
    vmG, lgG = list(P.vm), list(P.lg)
    P.vm, P.lg = list(vm0), list(lg0)
    mid_len = len(P.L)
    P("L_p2_s:"); Ss.emit(P); P("L_p2_join:")
    if len(lgG) > len(P.lg): P.lg = lgG
    assert lgG[-8:] == P.lg[-8:] or opt.stamps, (lgG, P.lg)
    P.alt = [vmG]
    join_len = len(P.L)
    if opt.sset == "2": st.n = 7
    st.mark(P, sets="123")
    for g_ in (144, F0): SC_.at(g_ - 1, lambda P_: st.mark(P_, sets="2"), c=3)
    SC_.emit(P)
    st.mark(P, sets="123")
    P(*poll_issue(sPF, 0, vP, ("pa",))); P("s_nop 6")
    for x in pub_block(8): P(*((x,) if isinstance(x, str) else x))
    P("s_waitcnt vmcnt(0)"); st.mark(P, sets="3")
    P(f"v_cmp_ne_u32 vcc, v{vOne}, v{vP}"); P("s_barrier")
    P(f"buffer_store_dword v{vOne}, off, s[{sWS}:{sWS+3}], s{sPFo} offset:128 sc1")
    P("s_cbranch_vccnz L_spin_pa"); P("L_ok_pa:"); spin_code("pa", sPF, 0, vP)
    st.mark(P, sets="13")
    PR = 160
    def unit_loads(q):
        for kk in range(8):
            P(f"buffer_load_dwordx4 {v(PR+32*q+4*kk,4)}, v{vLane16}, s[{sWS}:{sWS+3}], s{sU[q]} offen{opt.scl}", ("pp", q, kk))
            if kk < 7: P(f"s_add_u32 s{sU[q]}, s{sU[q]}, {72*1024}")
    def unit_math(q):
        D0 = 64
        for kk in range(8):
            if kk & 1 == 0: P.wait(vm=[("pp", q, kk + 1)])
            D = D0 + 8 * (kk >> 2)
            for j in range(4):
                src = PR + 32 * q + 4 * kk + j; d = D if kk & 3 == 0 else 32
                P(f"v_lshlrev_b32 v{d+2*j}, 16, v{src}"); P(f"v_and_b32 v{d+2*j+1}, 0xffff0000, v{src}")
            if kk & 3:
                for j in range(4): P(f"v_pk_add_f32 {v(D+2*j,2)}, {v(D+2*j,2)}, {v(32+2*j,2)}")
        for e in range(8): P(f"v_mul_f32 v{32+e}, s{sC_nl2e}, v{D0+8+e}")
        for e in range(8): P(f"v_exp_f32 v{32+e}, v{32+e}")
        for j in range(4): P(f"v_pk_mul_f32 {v(D0+2*j,2)}, {v(D0+2*j,2)}, {v(D0+8+2*j,2)}")
        for e in range(8): P(f"v_add_f32 v{32+e}, 1.0, v{32+e}")
        for e in range(8): P(f"v_rcp_f32 v{32+e}, v{32+e}")
        for j in range(4):
            P(f"v_lshlrev_b32 v{40+2*j}, 16, v{XR+4*q+j}"); P(f"v_and_b32 v{41+2*j}, 0xffff0000, v{XR+4*q+j}")
        for j in range(4): P(f"v_pk_fma_f32 {v(40+2*j,2)}, {v(D0+2*j,2)}, {v(32+2*j,2)}, {v(40+2*j,2)}")
        O = 48 + 4 * q
        for j in range(4): P(f"v_cvt_pk_bf16_f32 v{O+j}, v{40+2*j}, v{41+2*j}")
        for u in range(2): P(f"buffer_store_dwordx2 {v(O+2*u,2)}, v{vXo+u}, s[{sOut}:{sOut+3}], s{sXo[q]} offen")
    unit_loads(0); unit_loads(1)
    P(*poll_issue(sPF, 128, vP, ("pb",)))
    P.wait(vm=[("pb",)]); P(f"v_cmp_ne_u32 vcc, v{vOne}, v{vP}"); P("s_nop 1")
    P("s_cbranch_vccz L_ok_pb2")
    unit_math(0)
    P(f"s_cmp_lt_u32 s3, {NE-4}"); P("s_cbranch_scc0 L_no_e1a")
    unit_math(1)
    P("L_no_e1a:"); P.vm = []; P.alt = []
    P(f"s_cmp_ge_u32 s3, {NE-5}"); P("s_cbranch_scc0 L_fin")
    P("s_branch L_spin_pb"); P("L_ok_pb:"); spin_code("pb", sPF, 128, vP)
    unit_loads(2); unit_math(2); P("s_branch L_fin")
    P("L_ok_pb2:"); P("s_waitcnt vmcnt(0)")
    st.mark(P, sets="3")
    unit_loads(2); unit_math(0)
    P(f"s_cmp_lt_u32 s3, {NE-4}"); P("s_cbranch_scc0 L_no_e1")
    vm1 = list(P.vm)
    unit_math(1)
    P("L_no_e1:"); P.vm = vm1; P.alt = []
    P(f"s_cmp_ge_u32 s3, {NE-5}"); P("s_cbranch_scc0 L_fin")
    unit_math(2)
    P("L_fin:")
    if opt.stamps:
        P("s_waitcnt vmcnt(0)"); P("s_barrier"); st.mark(P); st.mark(P, True); st.flush(P, sWS, 16)
    P("L_main_end:"); P("s_endpgm")
    Q = Prog()
    for sp in spins: Q(sp)
    for i in range(1, 16):
        Q(f"L_rare{i}:"); Q(f"s_mov_b32 s{sRet}, {i}"); Q(f"s_branch L_rarebody{i&1}")
    for p in range(2):
        Q(f"L_rarebody{p}:"); Q("s_nop 15")
        d = vTmp; f = vTmp + 4; t = vTmp + 8
        for tb in range(4):
            for x in max8(p, tb, d + tb): Q(x)
        for x in xreduce4("v_max_f32", d, vTmp + 10): Q(x)
        for tb in range(4): Q(f"v_max_f32 v{d+tb}, 0, v{d+tb}")
        for tb in range(4): Q(f"v_sub_f32 v{f+tb}, 0, v{d+tb}")
        for tb in range(4): Q(f"v_exp_f32 v{f+tb}, v{f+tb}")
        for tb in range(4):
            for r in range(4): Q(f"v_sub_f32 v{NEGM+4*tb+r}, v{NEGM+4*tb+r}, v{d+tb}")
            for pp in range(2):
                for kb in range(2):
                    for r in range(4): Q(f"v_sub_f32 v{Sr(pp,kb,tb)+r}, v{Sr(pp,kb,tb)+r}, v{d+tb}")
            Q(f"v_mul_f32 v{vL+tb}, v{vL+tb}, v{f+tb}")
            for db in range(8):
                for r in range(4):
                    Q(f"v_accvgpr_read_b32 v{t}, a{Or(db,tb)+r}"); Q(f"v_mul_f32 v{t}, v{t}, v{f+tb}"); Q(f"v_accvgpr_write_b32 a{Or(db,tb)+r}, v{t}")
        for x in softmax(p, ladd=False): Q(x)
        Q("s_nop 3")
        for i in range(1, 16):
            if (i & 1) == p: Q(f"s_cmp_eq_u32 s{sRet}, {i}"); Q(f"s_cbranch_scc1 L_back{i}")
        Q("s_endpgm")
    lin_g = P.L[:mid_len] + P.L[join_len:]
    lin_s = P.L[:pre_len] + P.L[mid_len:]
    info = f"est: gemm {S.est(0, att0)} att {S.est(att0, att1)} (extras {extras})  p2 g-head {Sg.est()} s-head {Ss.est()} common {SC_.est()}"
    return P, Q, lin_g, lin_s, info, st.n

def build():
    m, mq, lin_g, lin_s, info, nst = gen_main()
    probs = check(lin_g, "main/g") + check(lin_s, "main/s") + check(mq.L, "rare")
    for p in probs[:40]: print("PROBLEM", p, file=sys.stderr)
    out = "; LayerNorm -> (GQA cached attention, SwiGLU FFN) -> x + s * silu(g);  emitted by a hand-written scheduling script\n"
    out += "; @launch grid=(256,1,1) block=(256,1,1) lds=163840\n"
    out += '.amdgcn_target "amdgcn-amd-amdhsa--gfx950"\n.text\n'
    out += khead(KNAME) + m.text() + mq.text() + "L_code_end:\n.fill 64, 4, 0xBF800000\ns_endpgm\n"
    out += kdesc(KNAME, 512, 256)
    print(info, "maxvm", m.maxvm, "maxlg", m.maxlg, "throttle", getattr(m, "throttle", 0), "autonop", getattr(m, "autonop", 0), f"ins {len(m.L)} stamps {nst} problems {len(probs)}", file=sys.stderr)
    return out

if __name__ == "__main__":
    outp = sys.argv[1]
    for a in sys.argv[2:]:
        k, val = a.split("=")
        cur = getattr(opt, k)
        setattr(opt, k, type(cur)(val) if not isinstance(cur, bool) else val in ("1", "True"))
    open(outp, "w").write(build())
```
